```python
import torch

def _softmax(x, axis=-1):
    return torch.softmax(x, dim=axis)
def _gelu(x):
    return torch.nn.functional.gelu(x, approximate="tanh")
def _silu(x):
    return torch.nn.functional.silu(x)
def _sigmoid(x):
    return torch.sigmoid(x)
def _layernorm(x, axis=-1, eps=1e-5):
    m = x.mean(dim=axis, keepdim=True)
    v = x.var(dim=axis, keepdim=True, unbiased=False)
    return (x - m) / torch.sqrt(v + eps)
def _scatter_add(tgt, idx, src, axis=0):
    return tgt.clone().index_add_(axis, idx, src)
def _segment_sum(src, seg, n):
    out = torch.zeros((n,) + src.shape[1:], dtype=src.dtype)
    return out.index_add_(0, seg, src)
def _pad(x, pw):
    flat = tuple(v for pair in reversed(pw) for v in pair)
    return torch.nn.functional.pad(x, flat)

kernel_name = 'interleave_layers__sliding_local_dilated__linear_kernel_hedgehog__prompt'

def setup_inputs():

    _w = (lambda a: (lambda t: t.to(torch.bfloat16) if t.is_floating_point() else t)(torch.as_tensor(a)))
    def _A_setup():
        B, S, D = 1, 2048, 448
        return {
            "x": _w((lambda *s: torch.randn(*s, dtype=torch.bfloat16) * 0.05)(B, S, D)),
            "wqkv": _w((lambda *s: torch.randn(*s, dtype=torch.bfloat16) * 0.05)(D, 3 * D)),
            "wo": _w((lambda *s: torch.randn(*s, dtype=torch.bfloat16) * 0.05)(D, D)),
        }
    _A_in = _A_setup()

    def _B_setup():
        B, S, D, H = 1, 2048, 448, 16
        Dh = D // H
        return {
            "x": _w((lambda *s: torch.randn(*s, dtype=torch.bfloat16) * 0.05)(B, S, D)),
            "wqkv": _w((lambda *s: torch.randn(*s, dtype=torch.bfloat16) * 0.4)(D, 3 * D)),
            "w_phi": _w((lambda *s: torch.randn(*s, dtype=torch.bfloat16) * 0.4)(H, Dh, Dh) * (Dh ** -0.5)),
            "wo": _w((lambda *s: torch.randn(*s, dtype=torch.bfloat16) * 0.1)(D, D)),
        }
    _B_in = _B_setup()

    return {
        "A_x": _A_in["x"],
        "A_wqkv": _A_in["wqkv"],
        "A_wo": _A_in["wo"],
        "B_x": _B_in["x"],
        "B_wqkv": _B_in["wqkv"],
        "B_w_phi": _B_in["w_phi"],
        "B_wo": _B_in["wo"],
    }

def reference(A_x, A_wqkv, A_wo, B_x, B_wqkv, B_w_phi, B_wo):
    def _A_ref(x, wqkv, wo):
        B, S, D = x.shape
        H = 16; Dh = D // H
        W, dil = 8, 2
        qkv = (lambda x, *d: x.permute(*d))((x @ wqkv).reshape(B, S, 3, H, Dh), 2, 0, 3, 1, 4)
        q, k, v = qkv[0], qkv[1], qkv[2]
        scale = Dh ** -0.5
        pos = torch.arange(S)
        off = torch.arange(W) * dil
        idx = pos[:, None] - off[None, :]
        mask = idx >= 0
        idx_c = torch.where(mask, idx, 0).reshape(-1)
        kg = k[:, :, idx_c, :].reshape(B, H, S, W, Dh)
        vg = v[:, :, idx_c, :].reshape(B, H, S, W, Dh)
        logits = torch.einsum("bhsd,bhswd->bhsw", q, kg) * scale
        logits = torch.where(mask[None, None, :, :], logits, -1e9)
        attn = _softmax(logits, axis=-1)
        o = torch.einsum("bhsw,bhswd->bhsd", attn, vg)
        return (lambda x, *d: x.permute(*d))(o, 0, 2, 1, 3).reshape(B, S, D) @ wo

    def _B_ref(x, wqkv, w_phi, wo):
        B, S, D = x.shape
        H = 16; Dh = D // H
        qkv = (lambda x, *d: x.permute(*d))((x @ wqkv).reshape(B, S, 3, H, Dh), 2, 0, 3, 1, 4)
        q, k, v = qkv[0], qkv[1], qkv[2]
        pq = torch.einsum("bhsd,hdf->bhsf", q, w_phi)
        pk = torch.einsum("bhsd,hdf->bhsf", k, w_phi)
        phi_q = torch.concatenate([_softmax(pq, axis=-1), _softmax(-pq, axis=-1)], axis=-1)
        phi_k = torch.concatenate([_softmax(pk, axis=-1), _softmax(-pk, axis=-1)], axis=-1)
        kv = torch.einsum("bhsf,bhsd->bhfd", phi_k, v)
        z  = torch.einsum("bhsf->bhf", phi_k)
        num = torch.einsum("bhqf,bhfd->bhqd", phi_q, kv)
        den = torch.einsum("bhqf,bhf->bhq", phi_q, z)[..., None] + 1e-6
        o = num / den
        return (lambda x, *d: x.permute(*d))(o, 0, 2, 1, 3).reshape(B, S, D) @ wo

    x = A_x
    x = x + _A_ref(_layernorm(x, axis=-1), A_wqkv, A_wo)
    x = x + _B_ref(_layernorm(x, axis=-1), B_wqkv, B_w_phi, B_wo)
    x = x + _A_ref(_layernorm(x, axis=-1), A_wqkv, A_wo)
    x = x + _B_ref(_layernorm(x, axis=-1), B_wqkv, B_w_phi, B_wo)
    return x
```

```python
import re

TRANS = ("v_exp_f32", "v_log_f32", "v_rcp_f32", "v_rsq_f32", "v_sqrt_f32", "v_sin_f32", "v_cos_f32")
NODEF_S = ("s_cmp", "s_cbranch", "s_waitcnt", "s_barrier", "s_nop", "s_endpgm", "s_branch",
           "s_setprio", "s_sleep", "s_bitcmp")

_reg_re = re.compile(r"^-?\|?([vas])(\d+)\|?$")
_rng_re = re.compile(r"^-?([vas])\[(\d+):(\d+)\]$")


def regs_of(op):
    op = op.strip()
    m = _reg_re.match(op)
    if m:
        return [(m.group(1), int(m.group(2)))]
    m = _rng_re.match(op)
    if m:
        return [(m.group(1), i) for i in range(int(m.group(2)), int(m.group(3)) + 1)]
    if op == "vcc":
        return [("vcc", 0)]
    if op in ("exec", "exec_lo", "exec_hi"):
        return [("exec", 0)]
    if op == "m0":
        return [("m0", 0)]
    return []


def split_ops(s):
    out, depth, cur = [], 0, ""
    for ch in s:
        if ch in "[(":
            depth += 1
        if ch in "])":
            depth -= 1
        if ch == "," and depth == 0:
            out.append(cur.strip())
            cur = ""
        else:
            cur += ch
    if cur.strip():
        out.append(cur.strip())
    return out


class Ins:
    __slots__ = ("text", "mn", "kind", "defs", "uses", "srcab", "srcc", "wide_store", "nslots", "sdwa_dst")

    def __init__(self, text):
        self.text = text
        t = text.split(";")[0].strip()
        parts = t.split(None, 1)
        mn = parts[0]
        self.mn = mn
        rest = parts[1] if len(parts) > 1 else ""
        ops = split_ops(rest)
        if ops:
            first = ops[-1].split(None, 1)
            ops[-1] = first[0]
            mods = first[1] if len(first) > 1 else ""
        else:
            mods = ""
        self.defs, self.uses, self.srcab, self.srcc = [], [], [], []
        self.wide_store = []
        self.nslots = 1
        self.sdwa_dst = False
        R = [regs_of(o) for o in ops]
        flat = lambda L: [r for x in L for r in x]
        base = mn.replace("_e32", "").replace("_e64", "").replace("_sdwa", "").replace("_dpp", "")
        if mn.startswith("v_mfma"):
            self.kind = "mfma8" if "32x32x16" in mn else "mfma4"
            self.defs = R[0]
            self.srcab = R[1] + R[2]
            self.srcc = R[3]
            self.uses = self.srcab + self.srcc
        elif mn.startswith("v_cmp"):
            self.kind = "valu"
            self.defs, self.uses = R[0], flat(R[1:])
        elif mn.startswith("v_permlane"):
            self.kind = "perm"
            self.defs = self.uses = R[0] + R[1]
        elif mn.startswith("v_readfirstlane") or mn.startswith("v_readlane"):
            self.kind = "readlane"
            self.defs, self.uses = R[0], flat(R[1:])
        elif mn.startswith("v_dot2"):
            self.kind = "dot"
            self.defs = R[0]
            self.uses = flat(R[1:]) + (R[0] if "dot2c" in mn else [])
        elif mn.startswith("v_"):
            self.kind = "trans" if base in TRANS else "valu"
            self.defs, self.uses = R[0], flat(R[1:])
            if base.startswith("v_fmac") or base.startswith("v_writelane") or "UNUSED_PRESERVE" in mods:
                self.uses = self.uses + R[0]
            if "dst_sel:WORD" in mods or "dst_sel:BYTE" in mods:
                self.sdwa_dst = True
        elif mn.startswith("ds_read"):
            self.kind = "dsr"
            self.defs, self.uses = R[0], flat(R[1:])
            if "d16" in mn:
                self.uses = self.uses + R[0]
        elif mn.startswith("ds_"):
            self.kind = "dsw"
            self.uses = flat(R)
        elif mn.startswith("buffer_load") or mn.startswith("global_load"):
            if " lds" in " " + mods or mods.endswith("lds"):
                self.kind = "vdma"
                self.uses = flat(R) + [("m0", 0)]
            else:
                self.kind = "vload"
                self.defs, self.uses = R[0], flat(R[1:])
        elif mn.startswith("buffer_store") or mn.startswith("global_store"):
            self.kind = "vstore"
            self.uses = flat(R)
            if "x4" in mn or "x3" in mn:
                self.wide_store = R[0] if mn.startswith("buffer") else R[1]
        elif mn.startswith("s_load") or mn.startswith("s_memtime") or mn.startswith("s_memrealtime"):
            self.kind = "smem"
            self.defs, self.uses = R[0], flat(R[1:])
        elif mn.startswith("s_"):
            self.kind = "salu"
            if any(mn.startswith(p) for p in NODEF_S):
                self.uses = flat(R)
            else:
                self.defs, self.uses = (R[0] if R else []), flat(R[1:])
            if mn == "s_nop":
                self.nslots = int(ops[0], 0) + 1
        else:
            raise ValueError("unknown instruction: " + text)


VALU_KINDS = ("valu", "trans", "perm", "readlane", "dot")
VMEM_KINDS = ("vload", "vstore", "vdma")


def need_gap(p, c):
    need = 0
    pd = set(p.defs)
    cu, cd = set(c.uses), set(c.defs)
    pv = p.kind in VALU_KINDS
    if p.kind in ("mfma8", "mfma4"):
        big = p.kind == "mfma8"
        if c.kind in ("mfma8", "mfma4"):
            if pd & set(c.srcab):
                need = max(need, 12 if big else 8)
            if pd & set(c.srcc):
                same = (p.kind == c.kind and p.defs == c.srcc)
                need = max(need, 0 if same else (10 if big else 6))
            elif pd & cd:
                need = max(need, 10 if big else 6)
        elif c.kind in VALU_KINDS or c.kind in VMEM_KINDS or c.kind in ("dsr", "dsw"):
            if pd & (cu | cd):
                need = max(need, 12 if big else 8)
        if c.kind in VALU_KINDS and set(p.srcc) & cd:
            need = max(need, 7 if big else 3)
    if pv:
        vd = {r for r in pd if r[0] in "va"}
        sd = {r for r in pd if r[0] in ("s", "vcc")}
        if c.kind in ("mfma8", "mfma4") and vd & cu:
            need = max(need, 3 if p.kind == "dot" else 2)
        if c.kind == "perm" and vd & cu:
            need = max(need, 2)
        if c.kind == "readlane" and vd & cu:
            need = max(need, 1)
        if c.kind in VMEM_KINDS and sd & cu:
            need = max(need, 5)
        if c.kind in VALU_KINDS and sd & cu:
            need = max(need, 4 if c.kind == "readlane" or c.mn.startswith("v_writelane") else 2)
        if p.kind == "trans" and c.kind in VALU_KINDS and vd & cu:
            need = max(need, 1)
        if p.sdwa_dst and c.kind in VALU_KINDS and vd & (cu | cd):
            need = max(need, 1)
        if p.kind == "dot" and vd & (cu | cd):
            same_op = c.kind == "dot" and c.mn == p.mn
            chain = same_op and (vd & cd) and not (vd & (cu - cd))
            if not chain:
                need = max(need, 3)
    if p.kind == "vstore" and p.wide_store and set(p.wide_store) & cd:
        need = max(need, 2)
    if p.kind == "salu" and ("m0", 0) in pd and c.kind == "vdma":
        need = max(need, 1)
    return need


class Asm:
    def __init__(self):
        self.lines = []
        self.tail = []
        self.vm = []
        self.lg = []
        self.nid = 0
        self.nlab = 0
        self.hist = []

    def _push(self, ins):
        gap, need = 0, 0
        for p in reversed(self.hist):
            need = max(need, need_gap(p, ins) - gap)
            gap += p.nslots
            if gap >= 14:
                break
        if need > 0:
            nop = Ins(f"s_nop {need - 1}")
            self.lines.append(("i", nop))
            self.hist.append(nop)
        self.lines.append(("i", ins))
        self.hist.append(ins)
        if len(self.hist) > 40:
            self.hist = self.hist[-24:]

    def _wait_needed(self, q, regs):
        idx = -1
        for i, (_, rr) in enumerate(q):
            if rr and regs & rr:
                idx = i
        return idx

    def waitcnt(self, vm=None, lg=None):
        parts = []
        if vm is not None:
            vm = min(vm, 63)
            if len(self.vm) > vm:
                parts.append(f"vmcnt({vm})")
                self.vm = self.vm[len(self.vm) - vm:] if vm else []
        if lg is not None:
            lg = min(lg, 15)
            if len(self.lg) > lg:
                parts.append(f"lgkmcnt({lg})")
                self.lg = self.lg[len(self.lg) - lg:] if lg else []
        if parts:
            self._push(Ins("s_waitcnt " + " ".join(parts)))

    def e(self, text):
        ins = Ins(text)
        regs = set(ins.uses) | set(ins.defs)
        iv = self._wait_needed(self.vm, regs)
        il = self._wait_needed(self.lg, regs)
        if ins.kind == "dsr" and il >= 0:
            il = self._wait_needed(self.lg, set(ins.uses))
        self.waitcnt(vm=(len(self.vm) - 1 - iv) if iv >= 0 else None,
                     lg=(len(self.lg) - 1 - il) if il >= 0 else None)
        self._push(ins)
        tok = None
        if ins.kind in VMEM_KINDS:
            self.nid += 1
            tok = ("vm", self.nid)
            self.vm.append([self.nid, set(ins.defs)])
        elif ins.kind in ("dsr", "dsw"):
            self.nid += 1
            tok = ("lg", self.nid)
            self.lg.append([self.nid, set(ins.defs)])
        return tok

    def wait(self, *toks):
        vm = lg = None
        for kind, n in toks:
            q = self.vm if kind == "vm" else self.lg
            for i, (k, _) in enumerate(q):
                if k == n:
                    left = len(q) - 1 - i
                    if kind == "vm":
                        vm = left if vm is None else min(vm, left)
                    else:
                        lg = left if lg is None else min(lg, left)
        self.waitcnt(vm=vm, lg=lg)

    def force(self, text):
        m = re.search(r"vmcnt\((\d+)\)", text)
        if m:
            n = int(m.group(1))
            self.vm = self.vm[len(self.vm) - n:] if n and len(self.vm) > n else (self.vm if n else [])
        m = re.search(r"lgkmcnt\((\d+)\)", text)
        if m:
            n = int(m.group(1))
            self.lg = self.lg[len(self.lg) - n:] if n and len(self.lg) > n else (self.lg if n else [])
        self._push(Ins(text))

    def label(self, name=None):
        if name is None:
            name = self.newlabel()
        self.lines.append(("l", name))
        return name

    def newlabel(self, p="L"):
        self.nlab += 1
        return f"{p}_{self.nlab}"

    def raw(self, text):
        self.lines.append(("r", text))

    def comment(self, text):
        self.lines.append(("r", "; " + text))

    def barrier(self):
        self.waitcnt(lg=0)
        self._push(Ins("s_barrier"))

    def text(self):
        out = []
        for k, p in self.lines:
            if k == "i":
                out.append("    " + p.text)
            elif k == "l":
                out.append(p + ":")
            else:
                out.append(p)
        out += self.tail
        return "\n".join(out) + "\n"


def vr(n, cnt=1):
    return f"v{n}" if cnt == 1 else f"v[{n}:{n + cnt - 1}]"


def ar(n, cnt=1):
    return f"a{n}" if cnt == 1 else f"a[{n}:{n + cnt - 1}]"


def sr(n, cnt=1):
    return f"s{n}" if cnt == 1 else f"s[{n}:{n + cnt - 1}]"
```

```python
import argparse, math, struct
from asmlib import Asm, vr, ar, sr

NAME = "interleave_layers__sliding_local_dilated__linear_kernel_hedgehog__prompt"
KERNEL = NAME + "_kernel"

WO = 0
WQ = 57344
SEG = 28672
SCR = 143376
CA = SCR
CB = SCR + 384
KVS = SCR + 768
ST = SCR + 5888
HST = SCR + 6912
PHI = HST
KVR = SCR + 15104
LDS_BYTES = 163840
PKIMG = WO
PKROW = 144
VIMG = WO + 128 * PKROW

WS_E = 0
WS_TAB = 4096
WS_FO = 8192
WS_FX = 8192 + 32768
WS_STAT = 0x20000
WS_HALO = 0xA0000
WS_KV = 0x100000
WS_O = 0x400000
WS_X = 0xC00000
WS_DBG = 0x1400000
WS_BYTES = 0x10000000
OOB = 0x40000000
GRP = 114688
TILE = 28672

sX, sP, sH, sW, sRB, sTag, sSlow, sBud = 4, 5, 6, 7, 8, 9, 10, 11
sT0, sT1, sT2, sT3 = 12, 13, 14, 15
sPC = 16
sPad = 18
sMaskC = 20
sTag16, sTo = 22, 23
rX0, rWA, rWoA, rWB, rPhi, rWoB, rOut, rWS = 24, 28, 32, 36, 40, 44, 48, 52
sOff, sCG, sRing, sWdst = 56, 57, 58, 59
sWsrc, sXcc, sHalf = 60, 61, 62
sK = 64
sM = 66
sWoSrc, sAcc = 68, 70
sStamp = 72

vL, vL16, vWb0, vWb2, vSide, vSideQ = 0, 1, 2, 3, 4, 5
vWo = 6
vOst = 10
vXst, vStatSt, vStatLd, vStatLd3, vFlagO, vFlagX = 14, 15, 16, 17, 18, 19
vWoD, vWD, vKsl, vVsl, vStW, vStR, vCq, vCv, vPadC, vTag, vHaloW = 20, 22, 23, 24, 25, 26, 27, 28, 29, 30, 31
vRes = 32
vBias = 48
vPhi = 68
vSel = 76
vOnes = 80
vHaloX, vHaloLd, vHaloStLd, vHaloStSt = 84, 85, 86, 87
vPkW, vVfW, vPkR, vVfR, vKvW, vKvR, vCh, vOut = 88, 89, 90, 91, 92, 93, 94, 95
vAq, vAk, vAv = 96, 112, 128
vWf = 144
vBq, vBk, vAt, vBv = 168, 184, 200, 216
vT = 232
aXF = 0
aST = 112
aHF = 200


def f32(x):
    return "0x%08x" % struct.unpack("<I", struct.pack("<f", x))[0]


LOG2E = math.log2(math.e)
QSCALE = 28 ** -0.5 * LOG2E
NEG = -1.0e30


class Gen:
    def __init__(self, opt):
        self.o = opt
        self.a = Asm()
        self.nstamp = 0
        self.stamp_names = []

    def e(self, t):
        return self.a.e(t)

    def stamp(self, name):
        if not self.o.prof or name in self.o.skip:
            return
        assert self.nstamp < 26, "too many stamps"
        pair = sStamp + 2 * (self.nstamp & 1)
        if self.nstamp >= 2:
            self.e(f"s_mov_b32 {sr(sStamp + 4 + self.nstamp - 2)}, {sr(pair)}")
        self.e(f"s_memtime {sr(pair, 2)}")
        self.stamp_names.append(name)
        self.nstamp += 1

    def buf(self, layer_stride, layer):
        return layer_stride * layer if self.o.sep else 0

    def pk(self, op, d, *src, bc=(), neg=()):
        n = len(src)
        ops, lo, hi = [], [], []
        for i, s in enumerate(src):
            if isinstance(s, str):
                ops.append(s)
                lo.append(0)
                hi.append(0 if i in bc else 1)
            elif i in bc:
                ops.append(vr(s & ~1, 2))
                lo.append(s & 1)
                hi.append(s & 1)
            else:
                assert s % 2 == 0
                ops.append(vr(s, 2))
                lo.append(0)
                hi.append(1)
        t = f"v_pk_{op}_f32 {vr(d, 2)}, " + ", ".join(ops)
        if any(lo):
            t += " op_sel:[" + ",".join(map(str, lo)) + "]"
        if not all(hi):
            t += " op_sel_hi:[" + ",".join(map(str, hi)) + "]"
        if neg:
            m = ",".join("1" if i in neg else "0" for i in range(n))
            t += f" neg_lo:[{m}] neg_hi:[{m}]"
        return t

    def mode_ops(self, ops):
        a = self.a
        ls, lj = a.newlabel("Lslow"), a.newlabel("Ljoin")
        self.e(f"s_cmp_lg_u32 {sr(sSlow)}, 0")
        self.e(f"s_cbranch_scc1 {ls}")
        start = len(a.lines)
        toks = [self.e(t) for t in ops]
        body = [p.text for k, p in a.lines[start:] if k == "i"]
        a.label(lj)
        a.tail.append(ls + ":")
        for t in body:
            a.tail.append("    " + t + (" sc1" if t.startswith("buffer_store") else ""))
        a.tail.append(f"    s_branch {lj}")
        return toks

    def poll(self, vflag, soff):
        a = self.a
        l0, l1 = a.newlabel("Lpoll"), a.newlabel("Ldone")
        a.label(l0)
        self.e(f"buffer_load_dword {vr(vT)}, {vr(vflag)}, {sr(rWS, 4)}, {sr(soff)} offen sc1")
        a.force("s_waitcnt vmcnt(0)")
        self.e(f"v_cmp_ne_u32 vcc, {sr(sTag)}, {vr(vT)}")
        self.e(f"s_cbranch_vccz {l1}")
        self.e(f"s_sub_u32 {sr(sBud)}, {sr(sBud)}, 1")
        self.e(f"s_cbranch_scc0 {l0}")
        self.e(f"s_mov_b32 {sr(sBud)}, 0")
        a.label(l1)

    def flag_store(self, soff):
        self.e("s_mov_b64 exec, 1")
        self.mode_ops([f"buffer_store_dword {vr(vTag)}, off, {sr(rWS, 4)}, {sr(soff)}"])
        self.e("s_mov_b64 exec, -1")

    def dma(self, vaddr, srd, m0_base, m0_imm, so_base, so_imm):
        if m0_base is None:
            self.e(f"s_mov_b32 m0, {m0_imm}")
        else:
            self.e(f"s_add_u32 m0, {sr(m0_base)}, {m0_imm}")
        if so_base is None:
            self.e(f"s_mov_b32 {sr(sT0)}, {so_imm}")
        else:
            self.e(f"s_add_u32 {sr(sT0)}, {sr(so_base)}, {so_imm}")
        return self.e(f"buffer_load_dwordx4 {vr(vaddr)}, {sr(srd, 4)}, {sr(sT0)} offen lds")

    def w_dma(self, srd, seg, c):
        return self.dma(vWD, srd, sWdst, seg * SEG + c * 4096, sWsrc, c * 172032 + seg * 896)

    def wo_dma(self, srd, j):
        return self.dma(vWoD + (j & 1), srd, sRing, j * 1024, sWoSrc, j * 7168)

    def w_tr(self, dst, seg, s):
        base = vWb2 if seg == 2 else vWb0
        off = (seg * SEG if seg < 2 else 0) + s * 1024
        return [f"ds_read_b64_tr_b16 {vr(dst, 2)}, {vr(base)} offset:{off}",
                f"ds_read_b64_tr_b16 {vr(dst + 2, 2)}, {vr(base)} offset:{off + 256}"]

    def side_tr(self, dst, base, s32):
        return [f"ds_read_b64_tr_b16 {vr(dst, 2)}, {vr(base)} offset:{s32 * 2048}",
                f"ds_read_b64_tr_b16 {vr(dst + 2, 2)}, {vr(base)} offset:{s32 * 2048 + 256}"]

    @staticmethod
    def mfma32(d, a, b, c):
        return f"v_mfma_f32_32x32x16_bf16 {vr(d, 16)}, {a}, {b}, {c}"

    @staticmethod
    def mfma16(d, a, b, c):
        return f"v_mfma_f32_16x16x32_bf16 {vr(d, 4)}, {a}, {b}, {c}"

    def both_halves(self, op, r, t):
        return [f"v_mov_b32 {vr(t)}, {vr(r)}", f"v_permlane32_swap_b32 {vr(r)}, {vr(t)}",
                f"{op} {vr(r)}, {vr(r)}, {vr(t)}"]

    def emit(self, lst):
        for t in lst:
            self.e(t)

    def prologue(self):
        e, a = self.e, self.a
        e("s_cmp_ge_u32 s2, 0x100")
        e("s_cbranch_scc1 L_end")
        for srd, off in ((rX0, 0), (rWA, 8), (rWS, 72), (rWoA, 16), (rWB, 32), (rPhi, 40), (rWoB, 48), (rOut, 56)):
            e(f"s_load_dwordx2 {sr(srd, 2)}, s[0:1], {off}")
        if self.o.prof:
            e("s_memrealtime s[100:101]")
        self.stamp("start")
        e(f"s_getpc_b64 {sr(sPC, 2)}")
        a.label("L_pc")
        e(f"v_lshrrev_b32 v2, 6, v0")
        e(f"v_and_b32 {vr(vL)}, 63, v0")
        e(f"v_readfirstlane_b32 {sr(sW)}, v2")
        e(f"s_sub_u32 {sr(sPC)}, {sr(sPC)}, L_pc-{KERNEL}")
        e(f"s_subb_u32 {sr(sPC + 1)}, {sr(sPC + 1)}, 0")
        e(f"v_lshlrev_b32 {vr(vL16)}, 4, {vr(vL)}")
        e(f"s_lshr_b32 {sr(sT0)}, s2, 3")
        e(f"s_lshl_b32 {sr(sT0)}, {sr(sT0)}, 2")
        e(f"s_add_u32 {sr(sT0)}, {sr(sT0)}, {sr(sW)}")
        e(f"s_lshl_b32 {sr(sT0)}, {sr(sT0)}, 10")
        e(f"v_add_u32 v2, {sr(sT0)}, {vr(vL16)}")
        e(f"v_min_u32 v2, L_code_end-{KERNEL}-16, v2")
        e(f"global_load_dwordx4 {vr(vT + 20, 4)}, v2, {sr(sPC, 2)}")
        e(f"s_and_b32 {sr(sX)}, s2, 7")
        e(f"s_bfe_u32 {sr(sP)}, s2, 0x10003")
        e(f"s_lshr_b32 {sr(sH)}, s2, 4")
        e(f"s_lshl_b32 {sr(sRB)}, {sr(sX)}, 1")
        e(f"s_or_b32 {sr(sRB)}, {sr(sRB)}, {sr(sP)}")
        e(f"s_lshr_b32 {sr(sCG)}, {sr(sH)}, 1")
        for srd, n in ((rX0, 1835008), (rWA, 1204224), (rWS, WS_BYTES), (rWoA, 401408), (rWB, 1204224),
                       (rPhi, 25088), (rWoB, 401408), (rOut, 1835008)):
            e(f"s_mov_b32 {sr(srd + 2)}, {n}")
            e(f"s_mov_b32 {sr(srd + 3)}, 0x20000")
        vXD, vHD, vRD = vT, vT + 1, vT + 2
        t0, t1, t2 = vT + 4, vT + 5, vT + 6
        e(f"s_lshl_b32 {sr(sT0)}, {sr(sX)}, 8")
        e(f"s_add_u32 {sr(sT0)}, {sr(sT0)}, {sr(sP)}")
        e(f"s_lshl_b32 {sr(sT1)}, {sr(sW)}, 6")
        e(f"s_add_u32 {sr(sT1)}, {sr(sT1)}, {sr(sT0)}")
        e(f"s_mul_i32 {sr(sT1)}, {sr(sT1)}, 896")
        e(f"v_lshrrev_b32 {vr(t0)}, 2, {vr(vL)}")
        e(f"v_lshrrev_b32 {vr(t1)}, 4, {vr(vL)}")
        e(f"v_xor_b32 {vr(t2)}, {vr(t1)}, {vr(vL)}")
        e(f"v_and_b32 {vr(t2)}, 3, {vr(t2)}")
        e(f"v_mul_u32_u24 {vr(vXD)}, 1792, {vr(t0)}")
        e(f"v_lshl_add_u32 {vr(vXD)}, {vr(t2)}, 4, {vr(vXD)}")
        e(f"v_add_u32 {vr(vXD)}, {sr(sT1)}, {vr(vXD)}")
        e(f"s_mul_i32 {sr(sT2)}, {sr(sH)}, 56")
        e(f"s_and_b32 {sr(sT3)}, {sr(sH)}, 1")
        e(f"s_lshl_b32 {sr(sT3)}, {sr(sT3)}, 3")
        e(f"s_sub_u32 {sr(sT2)}, {sr(sT2)}, {sr(sT3)}")
        e(f"v_and_b32 {vr(t2)}, 3, {vr(vL)}")
        e(f"v_mul_u32_u24 {vr(vWD)}, 2688, {vr(t0)}")
        e(f"v_lshl_add_u32 {vr(vWD)}, {vr(t2)}, 4, {vr(vWD)}")
        e(f"v_add_u32 {vr(vWD)}, {sr(sT2)}, {vr(vWD)}")
        e(f"s_mul_i32 {sr(sRing)}, {sr(sW)}, 14336")
        e(f"s_lshl_b32 {sr(sWdst)}, {sr(sW)}, 10")
        e(f"s_add_u32 {sr(sWdst)}, {sr(sWdst)}, {WQ}")
        e(f"s_mul_i32 {sr(sWsrc)}, {sr(sW)}, 43008")
        e(f"s_mul_i32 {sr(sWoSrc)}, {sr(sW)}, {14 * 7168}")
        e(f"s_sub_i32 {sr(sT1)}, {sr(sT0)}, 16")
        e(f"s_max_i32 {sr(sT1)}, {sr(sT1)}, 0")
        e(f"s_mul_i32 {sr(sT1)}, {sr(sT1)}, 896")
        e(f"s_lshl_b32 {sr(sT2)}, {sr(sW)}, 8")
        e(f"s_add_u32 {sr(sT1)}, {sr(sT1)}, {sr(sT2)}")
        e(f"v_and_b32 {vr(vHD)}, 7, {vr(t0)}")
        e(f"v_mul_u32_u24 {vr(vHD)}, 1792, {vr(vHD)}")
        e(f"v_lshl_add_u32 {vr(vHD)}, {vr(t2)}, 4, {vr(vHD)}")
        e(f"v_lshrrev_b32 {vr(t2)}, 5, {vr(vL)}")
        e(f"v_lshl_add_u32 {vr(vHD)}, {vr(t2)}, 6, {vr(vHD)}")
        e(f"v_add_u32 {vr(vHD)}, {sr(sT1)}, {vr(vHD)}")
        e(f"s_lshr_b32 {sr(sTo)}, {sr(sT3)}, 2")
        e(f"s_lshr_b32 {sr(sT1)}, {sr(sW)}, 1")
        e(f"s_add_u32 {sr(sTo)}, {sr(sTo)}, {sr(sT1)}")
        e(f"s_lshl_b32 {sr(sT1)}, {sr(sTo)}, 1")
        e(f"s_and_b32 {sr(sT2)}, {sr(sW)}, 1")
        e(f"s_add_u32 {sr(sT1)}, {sr(sT1)}, {sr(sT2)}")
        e(f"s_lshl_b32 {sr(sT1)}, {sr(sT1)}, 5")
        e(f"s_add_u32 {sr(sT1)}, {sr(sT1)}, {sr(sT0)}")
        e(f"s_mul_i32 {sr(sT1)}, {sr(sT1)}, 896")
        e(f"s_lshl_b32 {sr(sT2)}, {sr(sCG)}, 7")
        e(f"s_add_u32 {sr(sOff)}, {sr(sT1)}, {sr(sT2)}")
        e(f"v_lshrrev_b32 {vr(vRD)}, 3, {vr(vL)}")
        e(f"v_mul_u32_u24 {vr(vRD)}, 1792, {vr(vRD)}")
        e(f"v_and_b32 {vr(t2)}, 7, {vr(vL)}")
        e(f"v_lshl_add_u32 {vr(vRD)}, {vr(t2)}, 4, {vr(vRD)}")
        e(f"v_add_u32 {vr(vRD)}, {sr(sOff)}, {vr(vRD)}")
        a.force("s_waitcnt lgkmcnt(0)")
        self.tokE = e(f"buffer_load_dword {vr(vTag)}, off, {sr(rWS, 4)}, 0 sc1")
        self.vXD = vXD
        self.chunk_tok = {}
        self.l1_chunk(0)
        e(f"s_lshl_b32 {sr(sT3)}, {sr(sW)}, 11")
        self.dma(vHD, rX0, sT3, HST, None, 0)
        self.dma(vHD, rX0, sT3, HST + 1024, None, 128)
        self.dma(vRD, rX0, sRing, 12288, None, 0)
        tk = self.dma(vRD, rX0, sRing, 12288 + 1024, None, 8 * 1792)
        self.chunk_tok[0] = tk
        self.l1_chunk(1)
        self.l1_chunk(2)
        self.constants()

    def l1_chunk(self, c):
        for seg in range(3):
            self.w_dma(rWA, seg, c)
        for b in (2 * c, 2 * c + 1):
            for u in (0, 1):
                tk = self.dma(self.vXD, rX0, sRing, (b % 6) * 2048 + u * 1024, None, b * 64 + u * 28672)
        self.chunk_tok[c] = tk

    def constants(self):
        e, a = self.e, self.a
        t = [vT + 4 + i for i in range(12)]
        hh, t31, r4, c4, g, t15, tm = t[0:7]
        x, y, z = t[7:10]
        e(f"v_lshrrev_b32 {vr(hh)}, 5, {vr(vL)}")
        e(f"v_and_b32 {vr(t31)}, 31, {vr(vL)}")
        e(f"v_bfe_u32 {vr(r4)}, {vr(vL)}, 2, 2")
        e(f"v_and_b32 {vr(c4)}, 3, {vr(vL)}")
        e(f"v_lshrrev_b32 {vr(g)}, 4, {vr(vL)}")
        e(f"v_and_b32 {vr(t15)}, 15, {vr(vL)}")
        e(f"s_mov_b32 {sr(sBud)}, 0x40000")
        e(f"s_mov_b32 {sr(sHalf)}, 0")
        e(f"s_mov_b32 {sr(sHalf + 1)}, -1")
        e(f"s_mov_b32 {sr(sPad)}, 0xf0000000")
        e(f"s_mov_b32 {sr(sPad + 1)}, 0xf0000000")
        e(f"s_and_b32 {sr(sT3)}, {sr(sW)}, 1")
        e(f"s_mov_b32 {sr(sMaskC)}, 0x00010001")
        e(f"s_cmp_eq_u32 {sr(sT3)}, 0")
        e(f"s_cselect_b32 {sr(sMaskC + 1)}, 0x00010001, 1")
        e(f"s_and_b32 {sr(sT2)}, {sr(sH)}, 1")
        e(f"s_lshl_b32 {sr(sT2)}, {sr(sT2)}, 3")
        e(f"s_add_u32 {sr(sT2)}, {sr(sT2)}, {WQ}")
        e(f"v_lshl_add_u32 {vr(x)}, {vr(hh)}, 3, {vr(r4)}")
        e(f"v_lshlrev_b32 {vr(x)}, 6, {vr(x)}")
        e(f"v_and_b32 {vr(y)}, 1, {vr(g)}")
        e(f"v_lshl_add_u32 {vr(y)}, {vr(y)}, 2, {vr(c4)}")
        e(f"v_lshl_add_u32 {vr(x)}, {vr(y)}, 3, {vr(x)}")
        e(f"v_add_u32 {vr(vWb0)}, {sr(sT2)}, {vr(x)}")
        e(f"v_add_u32 {vr(vWb2)}, {2 * SEG}, {vr(vWb0)}")
        e(f"v_lshl_add_u32 {vr(x)}, {vr(g)}, 3, {vr(r4)}")
        e(f"v_lshlrev_b32 {vr(y)}, 6, {vr(x)}")
        e(f"v_lshl_add_u32 {vr(y)}, {vr(c4)}, 3, {vr(y)}")
        e(f"s_lshl_b32 {sr(sT1)}, {sr(sT3)}, 5")
        e(f"s_add_u32 {sr(sT2)}, {sr(sT2)}, {sr(sT1)}")
        e(f"v_add_u32 {vr(vSideQ)}, {sr(sT2)}, {vr(y)}")
        e(f"s_lshr_b32 {sr(sT1)}, {sr(sW)}, 1")
        e(f"s_add_u32 {sr(sT1)}, {sr(sT1)}, 1")
        e(f"s_mul_i32 {sr(sT0)}, {sr(sT1)}, {SEG}")
        e(f"v_add_u32 {vr(vSide)}, {sr(sT0)}, {vr(vSideQ)}")
        e(f"s_lshl_b32 {sr(sT1)}, {sr(sT1)}, 7")
        e(f"s_lshl_b32 {sr(sT0)}, {sr(sT3)}, 6")
        e(f"s_add_u32 {sr(sT1)}, {sr(sT1)}, {sr(sT0)}")
        e(f"s_add_u32 {sr(sT1)}, {sr(sT1)}, {CA}")
        e(f"v_lshlrev_b32 {vr(z)}, 4, {vr(g)}")
        e(f"v_add_u32 {vr(vCh)}, {sr(sT1)}, {vr(z)}")
        e(f"v_lshlrev_b32 {vr(x)}, 7, {vr(x)}")
        e(f"v_lshl_add_u32 {vr(x)}, {vr(c4)}, 3, {vr(x)}")
        e(f"v_lshrrev_b32 {vr(y)}, 1, {vr(r4)}")
        e(f"v_and_b32 {vr(z)}, 1, {vr(g)}")
        e(f"v_lshl_add_u32 {vr(y)}, {vr(z)}, 1, {vr(y)}")
        e(f"v_lshl_add_u32 {vr(vWo)}, {vr(y)}, 5, {vr(x)}")
        for ct in (1, 2, 3):
            e(f"v_xor_b32 {vr(vWo + ct)}, {ct << 5}, {vr(vWo)}")
        e(f"v_lshlrev_b32 {vr(z)}, 1, {vr(z)}")
        e(f"v_xor_b32 {vr(z)}, {vr(z)}, {vr(vL)}")
        e(f"v_and_b32 {vr(z)}, 7, {vr(z)}")
        e(f"v_lshrrev_b32 {vr(y)}, 3, {vr(vL)}")
        e(f"v_mul_u32_u24 {vr(y)}, 896, {vr(y)}")
        e(f"v_lshl_add_u32 {vr(y)}, {vr(z)}, 4, {vr(y)}")
        e(f"s_lshl_b32 {sr(sT0)}, {sr(sCG)}, 7")
        e(f"v_add_u32 {vr(vWoD)}, {sr(sT0)}, {vr(y)}")
        e(f"v_xor_b32 {vr(vWoD + 1)}, 64, {vr(vWoD)}")
        e(f"s_mul_i32 {sr(sT0)}, {sr(sH)}, 7")
        e(f"v_add_u32 {vr(x)}, {sr(sT0)}, {vr(hh)}")
        e(f"v_bfe_u32 {vr(y)}, {vr(vL)}, 4, 1")
        e(f"v_mul_u32_u24 {vr(y)}, 14336, {vr(y)}")
        e(f"v_lshl_add_u32 {vr(y)}, {vr(t15)}, 4, {vr(y)}")
        e(f"s_mul_i32 {sr(sT0)}, {sr(sW)}, {TILE}")
        e(f"v_add_u32 {vr(y)}, {sr(sT0)}, {vr(y)}")
        for i in range(4):
            e(f"v_add_u32 {vr(z)}, {2 * i}, {vr(x)}")
            e(f"v_lshrrev_b32 {vr(tm)}, 1, {vr(z)}")
            e(f"v_lshl_add_u32 {vr(vOst + i)}, {vr(tm)}, 8, {vr(y)}")
            e(f"v_and_b32 {vr(z)}, 1, {vr(z)}")
            e(f"v_lshl_add_u32 {vr(vOst + i)}, {vr(z)}, 3, {vr(vOst + i)}")
        e(f"v_mov_b32 {vr(tm)}, {OOB}")
        e(f"v_cndmask_b32_e64 {vr(vOst + 3)}, {vr(vOst + 3)}, {vr(tm)}, {sr(sHalf, 2)}")
        e(f"v_and_b32 {vr(z)}, 1, {vr(g)}")
        e(f"v_lshlrev_b32 {vr(x)}, 10, {vr(z)}")
        e(f"v_lshl_add_u32 {vr(x)}, {vr(hh)}, 9, {vr(x)}")
        e(f"v_lshl_add_u32 {vr(x)}, {vr(t15)}, 4, {vr(x)}")
        e(f"s_mul_i32 {sr(sT0)}, {sr(sTo)}, {TILE}")
        e(f"s_lshl_b32 {sr(sT1)}, {sr(sCG)}, 12")
        e(f"s_add_u32 {sr(sT0)}, {sr(sT0)}, {sr(sT1)}")
        e(f"s_lshl_b32 {sr(sT1)}, {sr(sT3)}, 8")
        e(f"s_add_u32 {sr(sT0)}, {sr(sT0)}, {sr(sT1)}")
        e(f"v_add_u32 {vr(vXst)}, {sr(sT0)}, {vr(x)}")
        e(f"v_mul_u32_u24 {vr(x)}, 1792, {vr(t15)}")
        e(f"v_lshl_add_u32 {vr(x)}, {vr(z)}, 5, {vr(x)}")
        e(f"v_lshl_add_u32 {vr(x)}, {vr(hh)}, 4, {vr(x)}")
        e(f"v_add_u32 {vr(vOut)}, {sr(sOff)}, {vr(x)}")
        e(f"v_lshlrev_b32 {vr(x)}, 3, {vr(t15)}")
        e(f"v_lshl_add_u32 {vr(x)}, {vr(hh)}, 2, {vr(x)}")
        e(f"s_lshl_b32 {sr(sT0)}, {sr(sTo)}, 11")
        e(f"s_lshl_b32 {sr(sT1)}, {sr(sCG)}, 8")
        e(f"s_add_u32 {sr(sT0)}, {sr(sT0)}, {sr(sT1)}")
        e(f"s_lshl_b32 {sr(sT1)}, {sr(sT3)}, 7")
        e(f"s_add_u32 {sr(sT0)}, {sr(sT0)}, {sr(sT1)}")
        e(f"v_add_u32 {vr(vStatSt)}, {sr(sT0)}, {vr(x)}")
        e(f"s_mov_b32 {sr(sM)}, 0xffff0000")
        e(f"s_mov_b32 {sr(sM + 1)}, 0xffff0000")
        e(f"v_cndmask_b32_e64 {vr(vStatSt)}, {vr(vStatSt)}, {vr(tm)}, {sr(sM, 2)}")
        e(f"s_and_b32 {sr(sT0)}, {sr(sH)}, 1")
        e(f"s_cmp_eq_u32 {sr(sW)}, 3")
        e(f"s_cselect_b32 {sr(sT0)}, {sr(sT0)}, 0")
        e(f"s_cmp_lt_u32 {sr(sH)}, 14")
        e(f"s_cselect_b32 {sr(sT0)}, {sr(sT0)}, 0")
        e(f"s_cmp_eq_u32 {sr(sT0)}, 1")
        e(f"s_cselect_b32 {sr(sT0)}, 0, {OOB}")
        e(f"s_lshl_b32 {sr(sT1)}, {sr(sRB)}, 13")
        e(f"s_add_u32 {sr(sT0)}, {sr(sT0)}, {sr(sT1)}")
        e(f"s_add_u32 {sr(sT0)}, {sr(sT0)}, {WS_HALO}")
        e(f"s_lshl_b32 {sr(sT1)}, {sr(sCG)}, 10")
        e(f"s_add_u32 {sr(sT1)}, {sr(sT1)}, {sr(sT0)}")
        e(f"s_lshl_b32 {sr(sT2)}, {sr(sCG)}, 6")
        e(f"s_add_u32 {sr(sT2)}, {sr(sT2)}, {sr(sT0)}")
        e(f"s_add_u32 {sr(sT2)}, {sr(sT2)}, 7168")
        for i in range(4):
            e(f"v_mov_b32 {vr(vAq + i)}, -1")
        e(f"v_add_u32 {vr(y)}, {sr(sT1)}, {vr(vL16)}")
        e(f"buffer_store_dwordx4 {vr(vAq, 4)}, {vr(y)}, {sr(rWS, 4)}, 0 offen sc1")
        e(f"v_lshlrev_b32 {vr(y)}, 2, {vr(t15)}")
        e(f"v_add_u32 {vr(y)}, {sr(sT2)}, {vr(y)}")
        e(f"buffer_store_dword {vr(vAq)}, {vr(y)}, {sr(rWS, 4)}, 0 offen sc1")
        e(f"s_mov_b32 {sr(sM)}, 0x00ff00ff")
        e(f"s_mov_b32 {sr(sM + 1)}, 0x00ff00ff")
        e(f"v_and_b32 {vr(x)}, 7, {vr(vL)}")
        e(f"v_lshl_add_u32 {vr(y)}, {vr(z)}, 1, {vr(hh)}")
        e(f"v_lshlrev_b32 {vr(y)}, 7, {vr(y)}")
        e(f"v_lshl_add_u32 {vr(y)}, {vr(x)}, 4, {vr(y)}")
        e(f"v_add_u32 {vr(vHaloX)}, {sr(sT1)}, {vr(y)}")
        e(f"v_cndmask_b32_e64 {vr(vHaloX)}, {vr(vHaloX)}, {vr(tm)}, {sr(sM, 2)}")
        e(f"v_lshlrev_b32 {vr(y)}, 3, {vr(x)}")
        e(f"v_lshl_add_u32 {vr(vHaloStSt)}, {vr(hh)}, 2, {vr(y)}")
        e(f"v_add_u32 {vr(vHaloStSt)}, {sr(sT2)}, {vr(vHaloStSt)}")
        e(f"s_mov_b32 {sr(sAcc)}, 0xffff00ff")
        e(f"s_mov_b32 {sr(sAcc + 1)}, 0xffff00ff")
        e(f"v_cndmask_b32_e64 {vr(vHaloStSt)}, {vr(vHaloStSt)}, {vr(tm)}, {sr(sAcc, 2)}")
        e(f"s_lshl_b32 {sr(sT0)}, {sr(sRB)}, 13")
        e(f"s_add_u32 {sr(sT0)}, {sr(sT0)}, {WS_HALO - 2 * 8192}")
        e(f"s_cmp_eq_u32 {sr(sX)}, 0")
        e(f"s_cselect_b32 {sr(sT0)}, {OOB}, {sr(sT0)}")
        e(f"v_lshlrev_b32 {vr(vHaloLd)}, 7, {vr(g)}")
        e(f"v_lshl_add_u32 {vr(vHaloLd)}, {vr(x)}, 4, {vr(vHaloLd)}")
        e(f"v_add_u32 {vr(vHaloLd)}, {sr(sT0)}, {vr(vHaloLd)}")
        e(f"v_cndmask_b32_e64 {vr(vHaloLd)}, {vr(vHaloLd)}, {vr(tm)}, {sr(sM, 2)}")
        e(f"v_lshl_add_u32 {vr(vHaloStLd)}, {vr(g)}, 6, {vr(y)}")
        e(f"s_add_u32 {sr(sT0)}, {sr(sT0)}, 7168")
        e(f"v_add_u32 {vr(vHaloStLd)}, {sr(sT0)}, {vr(vHaloStLd)}")
        e(f"v_cndmask_b32_e64 {vr(vHaloStLd)}, {vr(vHaloStLd)}, {vr(tm)}, {sr(sM, 2)}")
        e(f"v_lshlrev_b32 {vr(y)}, 7, {vr(z)}")
        e(f"v_lshl_add_u32 {vr(y)}, {vr(x)}, 4, {vr(y)}")
        e(f"v_lshl_add_u32 {vr(y)}, {vr(hh)}, 3, {vr(y)}")
        e(f"s_lshl_b32 {sr(sT0)}, {sr(sT3)}, 8")
        e(f"s_add_u32 {sr(sT0)}, {sr(sT0)}, {KVS}")
        e(f"v_add_u32 {vr(vHaloW)}, {sr(sT0)}, {vr(y)}")
        e(f"v_bfe_u32 {vr(y)}, {vr(vL)}, 2, 1")
        e(f"v_lshlrev_b32 {vr(y)}, 8, {vr(y)}")
        e(f"v_lshl_add_u32 {vr(y)}, {vr(g)}, 5, {vr(y)}")
        e(f"v_lshl_add_u32 {vr(y)}, {vr(c4)}, 1, {vr(y)}")
        e(f"s_lshl_b32 {sr(sT0)}, {sr(sT3)}, 7")
        e(f"s_add_u32 {sr(sT0)}, {sr(sT0)}, {KVS + 512}")
        e(f"v_add_u32 {vr(y)}, {sr(sT0)}, {vr(y)}")
        e(f"s_cmp_ge_u32 {sr(sW)}, 2")
        e(f"s_cselect_b64 vcc, -1, 0")
        e(f"v_cndmask_b32 {vr(vHaloW)}, {vr(vHaloW)}, {vr(y)}, vcc")
        e(f"v_lshlrev_b32 {vr(y)}, 3, {vr(t31)}")
        e(f"v_lshl_add_u32 {vr(y)}, {vr(hh)}, 8, {vr(y)}")
        e(f"s_lshl_b32 {sr(sT0)}, {sr(sW)}, 11")
        e(f"v_add_u32 {vr(vStatLd)}, {sr(sT0)}, {vr(y)}")
        e(f"v_cndmask_b32_e64 {vr(vStatLd3)}, {vr(vStatLd)}, {vr(tm)}, {sr(sHalf, 2)}")
        e(f"v_lshlrev_b32 {vr(vFlagO)}, 2, {vr(t15)}")
        e(f"v_min_u32 {vr(vFlagX)}, 52, {vr(vFlagO)}")
        e(f"s_lshl_b32 {sr(sT0)}, {sr(sW)}, 10")
        e(f"s_add_u32 {sr(sT1)}, {sr(sT0)}, {KVS}")
        e(f"v_lshlrev_b32 {vr(y)}, 7, {vr(hh)}")
        e(f"v_lshl_add_u32 {vr(y)}, {vr(x)}, 4, {vr(y)}")
        e(f"v_add_u32 {vr(vKsl)}, {sr(sT1)}, {vr(y)}")
        e(f"s_add_u32 {sr(sT1)}, {sr(sT1)}, 512")
        e(f"v_lshlrev_b32 {vr(y)}, 3, {vr(vL)}")
        e(f"v_add_u32 {vr(vVsl)}, {sr(sT1)}, {vr(y)}")
        e(f"s_add_u32 {sr(sT1)}, {sr(sT0)}, {KVR}")
        e(f"v_add_u32 {vr(vKvW)}, {sr(sT1)}, {vr(vL16)}")
        e(f"v_add_u32 {vr(vKvR)}, {KVR}, {vr(vL16)}")
        e(f"s_lshl_b32 {sr(sT1)}, {sr(sW)}, 8")
        e(f"s_add_u32 {sr(sT1)}, {sr(sT1)}, {ST}")
        e(f"v_lshlrev_b32 {vr(y)}, 2, {vr(vL)}")
        e(f"v_add_u32 {vr(vStW)}, {sr(sT1)}, {vr(y)}")
        e(f"v_lshlrev_b32 {vr(y)}, 4, {vr(hh)}")
        e(f"v_add_u32 {vr(vStR)}, {sr(sT1)}, {vr(y)}")
        e(f"v_add_u32 {vr(vCq)}, {CA}, {vr(y)}")
        e(f"v_lshlrev_b32 {vr(vCv)}, 2, {vr(t31)}")
        e(f"v_add_u32 {vr(vCv)}, {CA + 256}, {vr(vCv)}")
        e(f"v_mul_u32_u24 {vr(vPkW)}, {PKROW}, {vr(t31)}")
        e(f"v_add_u32 {vr(vPkW)}, {vr(vPkW)}, {vr(y)}")
        e(f"s_mul_i32 {sr(sT1)}, {sr(sW)}, {32 * PKROW}")
        e(f"v_add_u32 {vr(vPkW)}, {sr(sT1)}, {vr(vPkW)}")
        e(f"s_lshl_b32 {sr(sT1)}, {sr(sW)}, 11")
        e(f"s_add_u32 {sr(sT1)}, {sr(sT1)}, {VIMG}")
        e(f"v_add_u32 {vr(vVfW)}, {sr(sT1)}, {vr(vL16)}")
        e(f"v_lshlrev_b32 {vr(y)}, 4, {vr(hh)}")
        e(f"v_lshl_add_u32 {vr(y)}, {vr(z)}, 2, {vr(y)}")
        e(f"v_add_u32 {vr(y)}, {vr(y)}, {vr(r4)}")
        e(f"v_mul_u32_u24 {vr(y)}, {PKROW}, {vr(y)}")
        e(f"v_lshl_add_u32 {vr(y)}, {vr(c4)}, 3, {vr(y)}")
        e(f"s_lshl_b32 {sr(sT1)}, {sr(sW)}, 5")
        e(f"v_add_u32 {vr(vPkR)}, {sr(sT1)}, {vr(y)}")
        e(f"v_lshlrev_b32 {vr(y)}, 10, {vr(hh)}")
        e(f"v_lshl_add_u32 {vr(y)}, {vr(z)}, 9, {vr(y)}")
        e(f"v_lshl_add_u32 {vr(y)}, {vr(t15)}, 4, {vr(y)}")
        e(f"v_add_u32 {vr(vVfR)}, {VIMG}, {vr(y)}")
        for i in range(4):
            e(f"v_mov_b32 {vr(vOnes + i)}, 0x3f803f80")
        e(f"v_cmp_eq_u32 vcc, 28, {vr(t31)}")
        e(f"v_cndmask_b32_e64 {vr(vPadC)}, 0, {vr(vOnes)}, vcc")
        e(f"v_lshlrev_b32 {vr(y)}, 2, {vr(hh)}")
        e(f"v_sub_u32 {vr(tm)}, {vr(t31)}, {vr(y)}")
        e(f"v_mov_b32 {vr(x)}, 0x3f80")
        e(f"v_mov_b32 {vr(y)}, 0x3f800000")
        for dd, k in enumerate((0, 2, 8, 10)):
            e(f"v_cmp_eq_u32 vcc, {k}, {vr(tm)}")
            e(f"v_cndmask_b32_e64 {vr(vSel + dd)}, 0, {vr(x)}, vcc")
            e(f"v_cmp_eq_u32 vcc, {k + 1}, {vr(tm)}")
            e(f"v_cndmask_b32 {vr(vSel + dd)}, {vr(vSel + dd)}, {vr(y)}, vcc")
        e(f"v_mov_b32 {vr(x)}, {f32(NEG)}")
        for r in range(16):
            e(f"v_subrev_u32 {vr(y)}, {8 * (r >> 2) + (r & 3)}, {vr(tm)}")
            e(f"v_cmp_gt_u32 vcc, 8, {vr(y)}")
            e(f"v_cndmask_b32_e64 {vr(vBias + r)}, {vr(x)}, 0, vcc")
        e(f"s_or_b32 {sr(sT0)}, {sr(sX)}, {sr(sW)}")
        e(f"s_cmp_eq_u32 {sr(sT0)}, 0")
        e(f"s_cselect_b32 {sr(sT0)}, 1000, 0")
        e(f"v_add_u32 {vr(y)}, {sr(sT0)}, {vr(tm)}")
        for j in range(4):
            e(f"v_cmp_gt_i32 vcc, {j}, {vr(y)}")
            e(f"v_cndmask_b32_e64 {vr(vBias + 16 + j)}, {vr(x)}, 0, vcc")
        e(f"v_mov_b32 {vr(x)}, 0")
        e(f"v_mov_b32 {vr(x + 1)}, 0")
        e(f"v_lshlrev_b32 {vr(z)}, 2, {vr(vL)}")
        e(f"v_add_u32 {vr(z)}, {CA}, {vr(z)}")
        for k in range(3):
            e(f"ds_write_b32 {vr(z)}, {vr(x)} offset:{256 * k}")
        e(f"v_lshlrev_b32 {vr(z)}, 3, {vr(vL)}")
        e(f"v_add_u32 {vr(z)}, {KVS + 512}, {vr(z)}")
        e(f"v_mov_b32 {vr(vT + 16)}, {vr(vPadC)}")
        e(f"v_mov_b32 {vr(vT + 17)}, {vr(vPadC)}")
        e(f"ds_write_b64 {vr(z)}, {vr(vT + 16, 2)}")
        a.wait(self.tokE)
        e(f"v_add_u32 {vr(vTag)}, 1, {vr(vTag)}")
        e(f"s_getreg_b32 {sr(sXcc)}, hwreg(HW_REG_XCC_ID, 0, 4)")
        e(f"v_readfirstlane_b32 {sr(sTag)}, {vr(vTag)}")
        e(f"v_mov_b32 {vr(vT + 16)}, {vr(vTag)}")
        e(f"v_mov_b32 {vr(vT + 17)}, {sr(sXcc)}")
        e(f"s_lshl_b32 {sr(sT0)}, {sr(sRB)}, 7")
        e(f"s_lshl_b32 {sr(sT1)}, {sr(sH)}, 3")
        e(f"s_add_u32 {sr(sT0)}, {sr(sT0)}, {sr(sT1)}")
        e(f"s_add_u32 {sr(sT0)}, {sr(sT0)}, {WS_TAB}")
        e(f"s_cmp_eq_u32 {sr(sW)}, 0")
        e(f"s_cselect_b32 {sr(sT0)}, {sr(sT0)}, {OOB}")
        e("s_mov_b64 exec, 1")
        e(f"buffer_store_dwordx2 {vr(vT + 16, 2)}, off, {sr(rWS, 4)}, {sr(sT0)} sc1")
        e("s_mov_b64 exec, -1")
        e(f"s_sub_u32 {sr(sT0)}, {sr(sTag)}, 1")
        e(f"s_bfe_u32 {sr(sT0)}, {sr(sT0)}, 0x10010")
        e(f"s_xor_b32 {sr(sT0)}, {sr(sT0)}, 1")
        e(f"s_and_b32 {sr(sTag16)}, {sr(sTag)}, 0x1fff")
        e(f"s_lshl_b32 {sr(sTag16)}, {sr(sTag16)}, 1")
        e(f"s_or_b32 {sr(sTag16)}, {sr(sTag16)}, {sr(sT0)}")

    def stats_finish(self, s, q, a_, b_):
        return [f"v_mul_f32 {vr(s)}, {f32(1 / 448)}, {vr(s)}",
                f"v_mul_f32 {vr(q)}, {f32(1 / 448)}, {vr(q)}",
                f"v_fma_f32 {vr(q)}, -{vr(s)}, {vr(s)}, {vr(q)}",
                f"v_max_f32 {vr(q)}, 0, {vr(q)}",
                f"v_add_f32 {vr(q)}, {f32(1e-5)}, {vr(q)}",
                f"v_rsq_f32 {vr(a_)}, {vr(q)}",
                f"v_mul_f32 {vr(b_)}, {vr(a_)}, {vr(s)}"]

    tA, tB, tAq, tBq, tAp, tCv, tHa, tHb = vT + 2, vT + 3, vT + 4, vT + 5, vT + 6, vT + 7, vT + 8, vT + 9
    hAcc = vT + 12
    hC = vT + 16
    cQ = vT + 20

    def stats_publish(self):
        t = vT
        return [f"v_cndmask_b32_e64 {vr(t)}, {vr(self.tA)}, {vr(self.tB)}, {sr(sHalf, 2)}",
                f"ds_write_b32 {vr(vStW)}, {vr(t)}"]

    def stats_readback(self):
        r = []
        for i in range(4):
            r.append(f"ds_read_b128 {vr(vAt + 4 * i, 4)}, {vr(vStR)} offset:{32 * i}")
        for i in range(4):
            r.append(f"ds_read_b128 {vr(vBv + 4 * i, 4)}, {vr(vStR)} offset:{128 + 32 * i}")
        return r

    def c_reads(self, coff, q=True, kv=True):
        r = []
        if kv:
            for i in range(4):
                r.append(f"ds_read_b128 {vr(vBk + 4 * i, 4)}, {vr(vCq)} offset:{coff + 128 + 32 * i}")
            r.append(f"ds_read_b32 {vr(self.tCv)}, {vr(vCv)} offset:{coff}")
        if q:
            for i in range(4):
                r.append(f"ds_read_b128 {vr(vBq + 4 * i, 4)}, {vr(vCq)} offset:{coff + 32 * i}")
        return r

    def scale16(self, base, s, packed):
        if packed:
            return [self.pk("mul", base + 2 * i, base + 2 * i, s, bc=(1,)) for i in range(8)]
        return [f"v_mul_f32 {vr(base + i)}, {vr(s)}, {vr(base + i)}" for i in range(16)]

    def q_scalars(self):
        return [f"v_mul_f32 {vr(self.tAq)}, {f32(QSCALE)}, {vr(self.tA)}",
                f"v_mul_f32 {vr(self.tBq)}, {f32(QSCALE)}, {vr(self.tB)}",
                f"v_cndmask_b32_e64 {vr(self.tAp)}, {vr(self.tAq)}, 0, {sr(sHalf, 2)}"]

    def row_reduce(self, s, q):
        return [f"v_permlane32_swap_b32 {vr(s)}, {vr(q)}",
                f"v_add_f32 {vr(s)}, {vr(s)}, {vr(q)}",
                f"v_mov_b32 {vr(q)}, {vr(s)}",
                f"v_permlane16_swap_b32 {vr(s)}, {vr(q)}",
                f"v_add_f32 {vr(s)}, {vr(s)}, {vr(q)}"]

    def halo_stats(self, s, q):
        r = self.row_reduce(s, q)
        r += [f"v_mov_b32 {vr(q)}, {vr(s)}", f"v_permlane32_swap_b32 {vr(s)}, {vr(q)}"]
        r += self.stats_finish(s, q, self.tHa, self.tHb)
        return r

    def gemm_l1(self):
        e, a = self.e, self.a
        xr = vBq
        hf = vBk
        sw = vBk + 8
        xb = vAt
        S, Q, hS, hQ = vAt + 4, vAt + 5, vAt + 6, vAt + 7
        t0, t1 = vAt + 8, vAt + 9
        e(f"v_and_b32 {vr(t0)}, 31, {vr(vL)}")
        e(f"v_lshrrev_b32 {vr(t1)}, 5, {vr(vL)}")
        e(f"v_bfe_u32 {vr(xb)}, {vr(vL)}, 2, 2")
        e(f"v_xor_b32 {vr(xb)}, {vr(xb)}, {vr(t1)}")
        e(f"v_lshlrev_b32 {vr(xb)}, 4, {vr(xb)}")
        e(f"v_lshl_add_u32 {vr(xb)}, {vr(t0)}, 6, {vr(xb)}")
        e(f"v_add_u32 {vr(xb)}, {sr(sRing)}, {vr(xb)}")
        e(f"v_xor_b32 {vr(xb + 1)}, 32, {vr(xb)}")
        e(f"v_and_b32 {vr(t0)}, 7, {vr(vL)}")
        e(f"v_lshrrev_b32 {vr(t1)}, 4, {vr(vL)}")
        e(f"v_lshlrev_b32 {vr(t1)}, 4, {vr(t1)}")
        e(f"v_lshl_add_u32 {vr(xb + 2)}, {vr(t0)}, 6, {vr(t1)}")
        e(f"v_add_u32 {vr(xb + 2)}, {HST}, {vr(xb + 2)}")
        for r in (S, Q, hS, hQ):
            e(f"v_mov_b32 {vr(r)}, 0")
        for c in range(7):
            a.wait(self.chunk_tok[c])
            a.barrier()
            if c == 0:
                self.stamp("l1_first")
                e(f"v_and_b32 {vr(t0)}, 15, {vr(vL)}")
                e(f"v_lshrrev_b32 {vr(t1)}, 4, {vr(vL)}")
                e(f"v_lshlrev_b32 {vr(t1)}, 3, {vr(t1)}")
                e(f"v_lshl_add_u32 {vr(t0)}, {vr(t0)}, 7, {vr(t1)}")
                e(f"v_add_u32 {vr(t0)}, {sr(sRing)}, {vr(t0)}")
                for ct in range(4):
                    e(f"ds_read_b64 {vr(vBv + 2 * ct, 2)}, {vr(t0)} offset:{12288 + 32 * ct}")
            last = None
            for k in range(4):
                b = 2 * c + (k >> 1)
                last = e(f"ds_read_b128 {vr(xr + 4 * k, 4)}, {vr(xb + (k & 1))} offset:{(b % 6) * 2048}")
            self.emit(self.w_tr(vWf, 0, 4 * c) + self.w_tr(vWf + 4, 1, 4 * c) + self.w_tr(vWf + 8, 2, 4 * c))
            if c + 3 < 7:
                a.wait(last)
                self.l1_chunk(c + 3)
            if c == 0:
                for i in range(8):
                    e(f"v_lshlrev_b32 {vr(vRes + 2 * i)}, 16, {vr(vBv + i)}")
                    e(f"v_and_b32 {vr(vRes + 2 * i + 1)}, 0xffff0000, {vr(vBv + i)}")
            for k in range(4):
                s = 4 * c + k
                wb, wn = vWf + 12 * (k & 1), vWf + 12 * ((k + 1) & 1)
                x = vr(xr + 4 * k, 4)
                first = s == 0
                nxt = [self.w_tr(wn + 4 * t, t, s + 1) if k < 3 else [] for t in range(3)]
                if k % 2 == 0:
                    s32 = s >> 1
                    nxt[0] = nxt[0] + [f"ds_read_b128 {vr(hf + 4 * (s32 & 1), 4)}, {vr(xb + 2)} offset:{s32 * 512}"]
                    nxt[1] = nxt[1] + self.side_tr(sw, vSide, s32)
                    nxt[2] = nxt[2] + self.side_tr(sw + 4, vSideQ, s32)
                e(self.mfma32(vAq, vr(wb, 4), x, "0" if first else vr(vAq, 16)))
                self.emit(nxt[0])
                e(self.mfma32(vAk, vr(wb + 4, 4), x, "0" if first else vr(vAk, 16)))
                self.emit(nxt[1])
                e(self.mfma32(vAv, x, vr(wb + 8, 4), "0" if first else vr(vAv, 16)))
                self.emit(nxt[2])
                if k % 2 == 1:
                    s32 = s >> 1
                    h4 = hf + 4 * (s32 & 1)
                    z = s32 == 0
                    e(self.mfma16(self.hAcc, vr(sw, 4), vr(h4, 4), "0" if z else vr(self.hAcc, 4)))
                    e(self.mfma16(self.hC, vr(sw, 4), vr(vOnes, 4), "0" if z else vr(self.hC, 4)))
                    e(self.mfma16(self.cQ, vr(sw + 4, 4), vr(vOnes, 4), "0" if z else vr(self.cQ, 4)))
                    for kk in (k - 1, k):
                        for d in range(4):
                            e(f"v_dot2c_f32_bf16 {vr(Q)}, {vr(xr + 4 * kk + d)}, {vr(xr + 4 * kk + d)}")
                            e(f"v_dot2c_f32_bf16 {vr(S)}, {vr(xr + 4 * kk + d)}, {vr(vOnes)}")
                    for d in range(4):
                        e(f"v_dot2c_f32_bf16 {vr(hQ)}, {vr(h4 + d)}, {vr(h4 + d)}")
                        e(f"v_dot2c_f32_bf16 {vr(hS)}, {vr(h4 + d)}, {vr(vOnes)}")
        self.stamp("l1_gemm")
        e(f"s_lshl_b32 {sr(sT1)}, {sr(sRB)}, 7")
        e(f"s_add_u32 {sr(sT1)}, {sr(sT1)}, {WS_TAB}")
        e(f"v_lshlrev_b32 {vr(t0)}, 1, {vr(vFlagO)}")
        self.tab = (vT + 10, self.cQ)
        e(f"buffer_load_dwordx2 {vr(vT + 10, 2)}, {vr(t0)}, {sr(rWS, 4)}, {sr(sT1)} offen sc1")
        for j in range(14):
            self.wo_dma(rWoA, j)
        e(f"s_lshr_b32 {sr(sT1)}, {sr(sW)}, 1")
        e(f"s_add_u32 {sr(sT1)}, {sr(sT1)}, 1")
        e(f"s_lshl_b32 {sr(sT1)}, {sr(sT1)}, 7")
        e(f"v_subrev_u32 {vr(t1)}, {sr(sT1)}, {vr(vCh)}")
        e(f"s_mov_b64 exec, {sr(sMaskC, 2)}")
        e(f"ds_write_b128 {vr(vCh)}, {vr(self.hC, 4)}")
        e(f"ds_write_b128 {vr(t1)}, {vr(self.cQ, 4)}")
        e("s_mov_b64 exec, -1")
        self.emit(self.both_halves("v_add_f32", S, vT))
        self.emit(self.both_halves("v_add_f32", Q, vT + 1))
        self.emit(self.stats_finish(S, Q, self.tA, self.tB))
        self.emit(self.halo_stats(hS, hQ))
        self.emit(self.stats_publish())
        a.barrier()
        self.emit(self.c_reads(0, q=False))
        self.emit(self.stats_readback())
        self.emit(self.c_reads(0, kv=False))
        self.emit(self.q_scalars())
        self.emit(self.scale16(vBk, self.tB, True))
        self.emit(self.scale16(vBv, self.tCv, True))
        self.emit(self.scale16(vBq, self.tBq, True))

    def check_table(self):
        e, a = self.e, self.a
        tab, vaddr = self.tab
        lr, lo = a.newlabel("Ltabretry"), a.newlabel("Ltabok")
        e(f"v_cmp_ne_u32 vcc, {sr(sTag)}, {vr(tab)}")
        e(f"s_cbranch_vccnz {lr}")
        a.label(lo)
        e(f"v_cmp_ne_u32 vcc, {sr(sXcc)}, {vr(tab + 1)}")
        e("s_cmp_lg_u64 vcc, 0")
        e(f"s_cselect_b32 {sr(sSlow)}, 1, {1 if self.o.force_slow else 0}")
        a.tail += [lr + ":",
                   f"    v_lshlrev_b32 {vr(vaddr)}, 1, {vr(vFlagO)}",
                   f"    s_lshl_b32 {sr(sT1)}, {sr(sRB)}, 7",
                   f"    s_add_u32 {sr(sT1)}, {sr(sT1)}, {WS_TAB}",
                   f"    buffer_load_dwordx2 {vr(tab, 2)}, {vr(vaddr)}, {sr(rWS, 4)}, {sr(sT1)} offen sc1",
                   "    s_waitcnt vmcnt(0)",
                   f"    v_cmp_ne_u32 vcc, {sr(sTag)}, {vr(tab)}",
                   f"    s_cbranch_vccz {lo}",
                   f"    s_sub_u32 {sr(sBud)}, {sr(sBud)}, 1",
                   f"    s_cbranch_scc0 {lr}",
                   f"    s_mov_b32 {sr(sBud)}, 0",
                   f"    s_branch {lo}"]

    def correct(self, acc, a_, bc, a_last=None, per_reg=False):
        r = []
        for i in range(8):
            if per_reg:
                r.append(self.pk("fma", acc + 2 * i, acc + 2 * i, a_ + 2 * i, bc + 2 * i, neg=(2,)))
            else:
                s = a_last if (a_last is not None and i >= 6) else a_
                r.append(self.pk("fma", acc + 2 * i, acc + 2 * i, s, bc + 2 * i, bc=(1,), neg=(2,)))
        return r

    @staticmethod
    def cvt(dst, src, n):
        return [f"v_cvt_pk_bf16_f32 {vr(dst + i)}, {vr(src + 2 * i)}, {vr(src + 2 * i + 1)}" for i in range(n)]

    def v_frags(self, Vf):
        r = self.correct(vAv, vAt, vBv, per_reg=True) + self.cvt(Vf, vAv, 8)
        r += [f"v_cndmask_b32_e64 {vr(Vf + i)}, {vr(Vf + i)}, {vr(vPadC)}, {sr(sPad, 2)}" for i in range(8)]
        return r

    def publish_o(self, layer, acc, eps):
        e, a = self.e, self.a
        t0, t1 = vT, vT + 1
        e(f"v_mov_b32 {vr(t0)}, {vr(acc + 12)}")
        e(f"v_mov_b32 {vr(t1)}, {vr(acc + 12)}")
        e(f"s_mul_i32 {sr(sOff)}, {sr(sRB)}, {GRP}")
        e(f"s_add_u32 {sr(sOff)}, {sr(sOff)}, {WS_O + self.buf(0x200000, layer)}")
        e(f"v_permlane32_swap_b32 {vr(t0)}, {vr(t1)}")
        if eps:
            e(f"v_add_f32 {vr(t1)}, {f32(eps)}, {vr(t1)}")
        e(f"v_rcp_f32 {vr(t1)}, {vr(t1)}")
        self.emit(self.scale16(acc, t1, True))
        self.emit(self.cvt(vWf, acc, 8))
        toks = self.mode_ops([f"buffer_store_dwordx2 {vr(vWf + 2 * i, 2)}, {vr(vOst + i)}, {sr(rWS, 4)}, {sr(sOff)} offen"
                              for i in range(4)])
        e(f"s_lshl_b32 {sr(sT1)}, {sr(sRB)}, 2")
        e(f"s_add_u32 {sr(sT1)}, {sr(sT1)}, {sr(sW)}")
        e(f"s_lshl_b32 {sr(sT1)}, {sr(sT1)}, 7")
        e(f"s_lshl_b32 {sr(sT2)}, {sr(sH)}, 2")
        e(f"s_add_u32 {sr(sT1)}, {sr(sT1)}, {sr(sT2)}")
        e(f"s_add_u32 {sr(sT1)}, {sr(sT1)}, {WS_FO + layer * 8192}")
        a.wait(*toks)
        self.flag_store(sT1)

    def attention(self, layer):
        e, a = self.e, self.a
        Kf, Vf, Qf = vWf, vWf + 8, vWf + 16
        self.emit(self.correct(vAk, self.tA, vBk))
        self.emit(self.cvt(Kf, vAk, 8))
        e("s_mov_b32 exec_lo, 0xff000000")
        e("s_mov_b32 exec_hi, 0xff000000")
        e(f"ds_write_b128 {vr(vKsl)}, {vr(Kf, 4)} offset:1024")
        e(f"ds_write_b128 {vr(vKsl)}, {vr(Kf + 4, 4)} offset:1280")
        e("s_mov_b64 exec, -1")
        self.emit(self.v_frags(Vf))
        e(f"ds_write_b64 {vr(vVsl)}, {vr(Vf + 6, 2)} offset:1024")
        h = self.hAcc
        for i in (0, 2):
            e(self.pk("mul", self.hC + i, self.hC + i, self.tHb, bc=(1,)))
            e(self.pk("fma", h + i, h + i, self.tHa, self.hC + i, bc=(1,), neg=(2,)))
        self.emit(self.cvt(h, h, 2))
        lv, lj = a.newlabel("Lhv"), a.newlabel("Lhj")
        e("s_mov_b32 exec_lo, 0xff00ff00")
        e("s_mov_b32 exec_hi, 0xff00ff00")
        e(f"s_cmp_ge_u32 {sr(sW)}, 2")
        e(f"s_cbranch_scc1 {lv}")
        e(f"ds_write_b64 {vr(vHaloW)}, {vr(h, 2)}")
        a.label(lj)
        a.tail += [lv + ":",
                   f"    s_cmp_eq_u32 {sr(sW)}, 3",
                   "    s_cselect_b32 exec_hi, 0x0000ff00, exec_hi",
                   f"    ds_write_b16 {vr(vHaloW)}, {vr(h)}",
                   f"    ds_write_b16_d16_hi {vr(vHaloW)}, {vr(h)} offset:8",
                   f"    ds_write_b16 {vr(vHaloW)}, {vr(h + 1)} offset:16",
                   f"    ds_write_b16_d16_hi {vr(vHaloW)}, {vr(h + 1)} offset:24",
                   f"    s_branch {lj}"]
        e("s_mov_b64 exec, -1")
        self.emit(self.correct(vAq, self.tAq, vBq, a_last=self.tAp))
        self.emit(self.cvt(Qf, vAq, 8))
        So, Sp = vAk, vAq
        e(self.mfma32(So, vr(Kf, 4), vr(Qf, 4), vr(vBias, 16)))
        e(self.mfma32(So, vr(Kf + 4, 4), vr(Qf + 4, 4), vr(So, 16)))
        a.force("s_waitcnt lgkmcnt(0)")
        a.barrier()
        Kp, Vp, P = vBq, vBq + 8, vBk
        e(f"ds_read_b128 {vr(Kp, 4)}, {vr(vKsl)}")
        e(f"ds_read_b128 {vr(Kp + 4, 4)}, {vr(vKsl)} offset:256")
        e(f"ds_read_b64 {vr(Vp + 2, 2)}, {vr(vVsl)}")
        e(f"v_mov_b32 {vr(Vp)}, 0")
        e(f"v_mov_b32 {vr(Vp + 1)}, 0")
        e(f"v_mov_b32 {vr(P + 8)}, 0")
        e(f"v_mov_b32 {vr(P + 9)}, 0")
        e(self.mfma32(Sp, vr(Kp, 4), vr(Qf, 4), vr(vBias + 4, 16)))
        e(self.mfma32(Sp, vr(Kp + 4, 4), vr(Qf + 4, 4), vr(Sp, 16)))
        m, m2 = vT, vT + 1
        e(f"v_max3_f32 {vr(m)}, {vr(So)}, {vr(So + 1)}, {vr(So + 2)}")
        e(f"v_max3_f32 {vr(m2)}, {vr(So + 3)}, {vr(So + 4)}, {vr(So + 5)}")
        for i in range(6, 14, 4):
            e(f"v_max3_f32 {vr(m)}, {vr(m)}, {vr(So + i)}, {vr(So + i + 1)}")
            e(f"v_max3_f32 {vr(m2)}, {vr(m2)}, {vr(So + i + 2)}, {vr(So + i + 3)}")
        e(f"v_max3_f32 {vr(m)}, {vr(m)}, {vr(So + 14)}, {vr(So + 15)}")
        if layer == 0:
            self.check_table()
        e(f"v_max3_f32 {vr(m2)}, {vr(m2)}, {vr(Sp + 12)}, {vr(Sp + 13)}")
        e(f"v_max3_f32 {vr(m)}, {vr(m)}, {vr(Sp + 14)}, {vr(Sp + 15)}")
        e(f"v_max_f32 {vr(m)}, {vr(m)}, {vr(m2)}")
        self.emit(self.both_halves("v_max_f32", m, m2))
        vals = [So + 2 * i for i in range(8)] + [Sp + 12, Sp + 14]
        for r in vals:
            e(self.pk("add", r, r, m, bc=(1,), neg=(1,)))
        dst = [P + i for i in range(8)] + [P + 10, P + 11]
        for r in vals:
            e(f"v_exp_f32 {vr(r)}, {vr(r)}")
            e(f"v_exp_f32 {vr(r + 1)}, {vr(r + 1)}")
        for r, d in zip(vals, dst):
            e(f"v_cvt_pk_bf16_f32 {vr(d)}, {vr(r)}, {vr(r + 1)}")
        O = vAv
        e(self.mfma32(O, vr(Vf, 4), vr(P, 4), "0"))
        e(self.mfma32(O, vr(Vf + 4, 4), vr(P + 4, 4), vr(O, 16)))
        e(self.mfma32(O, vr(Vp, 4), vr(P + 8, 4), vr(O, 16)))
        self.publish_o(layer, O, 0)
        self.stamp(f"o{layer + 1}_pub")

    def stash_addr(self):
        t = vT + 2
        self.e(f"v_add_u32 {vr(t)}, {sr(sWdst)}, {vr(vL16)}")
        self.e(f"v_add_u32 {vr(t + 1)}, {2 * SEG}, {vr(t)}")
        out = []
        for seg in range(3):
            for j in range(7):
                out.append((t + (seg == 2), (seg * SEG if seg < 2 else 0) + j * 4096))
        return out

    def stash_out(self):
        for i, (b, off) in enumerate(self.stash_addr()):
            self.e(f"ds_read_b128 {ar(aST + 4 + 4 * i, 4)}, {vr(b)} offset:{off}")

    def stash_swap(self):
        for i, (b, off) in enumerate(self.stash_addr()):
            self.e(f"ds_read_b128 {ar(aST + 4 * i, 4)}, {vr(b)} offset:{off}")
            self.e(f"ds_write_b128 {vr(b)}, {ar(aST + 4 + 4 * i, 4)} offset:{off}")

    def stash_in(self):
        for i, (b, off) in enumerate(self.stash_addr()):
            self.e(f"ds_write_b128 {vr(b)}, {ar(aST + 4 * i, 4)} offset:{off}")

    def load_phi(self):
        e = self.e
        m, f, t, u = vT + 4, vT + 5, vT + 6, vT + 7
        e(f"v_and_b32 {vr(m)}, 31, {vr(vL)}")
        e(f"v_lshrrev_b32 {vr(f)}, 4, {vr(m)}")
        e(f"v_bfe_u32 {vr(t)}, {vr(m)}, 2, 1")
        e(f"v_lshl_add_u32 {vr(f)}, {vr(f)}, 1, {vr(t)}")
        e(f"v_mul_u32_u24 {vr(f)}, 7, {vr(f)}")
        e(f"v_bfe_u32 {vr(t)}, {vr(m)}, 3, 1")
        e(f"v_and_b32 {vr(u)}, 3, {vr(m)}")
        e(f"v_lshl_add_u32 {vr(t)}, {vr(t)}, 2, {vr(u)}")
        e(f"v_add_u32 {vr(f)}, {vr(f)}, {vr(t)}")
        e(f"v_cmp_eq_u32 {sr(sM, 2)}, 7, {vr(t)}")
        e(f"v_lshrrev_b32 {vr(u)}, 5, {vr(vL)}")
        e(f"v_mul_u32_u24 {vr(u)}, 224, {vr(u)}")
        e(f"v_lshl_add_u32 {vr(f)}, {vr(f)}, 1, {vr(u)}")
        e(f"v_add_u32 {vr(f)}, {PHI}, {vr(f)}")
        for ee in range(2):
            for sg in range(8):
                off = (16 * ee + 8 * (sg >> 2) + (sg & 3)) * 56
                e(f"ds_read_u16 {vr(vBq + 8 * ee + sg)}, {vr(f)} offset:{off}")
        e(f"s_or_b64 {sr(sAcc, 2)}, {sr(sM, 2)}, {sr(sHalf, 2)}")
        for i in range(8):
            e(f"v_lshl_or_b32 {vr(vPhi + i)}, {vr(vBq + 2 * i + 1)}, 16, {vr(vBq + 2 * i)}")
            e(f"v_cndmask_b32_e64 {vr(vPhi + i)}, {vr(vPhi + i)}, 0, {sr(sAcc if i >= 6 else sM, 2)}")

    def between(self, layer):
        e, a = self.e, self.a
        if layer == 0:
            self.stash_out()
            a.waitcnt(lg=0)
            for c in range(7):
                for seg in range(3):
                    self.w_dma(rWB, seg, c)
            e(f"s_mul_i32 {sr(sT1)}, {sr(sH)}, 1568")
            self.dma(vL16, rPhi, None, PHI, sT1, 0)
            self.dma(vL16, rPhi, None, PHI + 1024, sT1, 1024)
            a.waitcnt(vm=0)
        elif layer == 1:
            self.stash_swap()
        elif layer == 2:
            self.stash_in()
        a.barrier()
        if layer == 0:
            self.load_phi()

    def outproj(self, layer):
        e, a = self.e, self.a
        lskip = a.newlabel("Lskip")
        a.waitcnt(vm=0, lg=0)
        e(f"s_cmp_ge_u32 {sr(sH)}, 14")
        e(f"s_cbranch_scc1 {lskip}")
        wf = vAq
        def wreads(s):
            r = []
            for ct in range(4):
                d = wf + 16 * (s & 1) + 4 * ct
                r.append([f"ds_read_b64_tr_b16 {vr(d, 2)}, {vr(vWo + ct)} offset:{s * 4096}",
                          f"ds_read_b64_tr_b16 {vr(d + 2, 2)}, {vr(vWo + ct)} offset:{s * 4096 + 512}"])
            return r
        for grp in wreads(0):
            self.emit(grp)
        e(f"s_lshl_b32 {sr(sT1)}, {sr(sRB)}, 2")
        e(f"s_add_u32 {sr(sT1)}, {sr(sT1)}, {sr(sTo)}")
        e(f"s_lshl_b32 {sr(sT1)}, {sr(sT1)}, 7")
        e(f"s_add_u32 {sr(sT1)}, {sr(sT1)}, {WS_FO + layer * 8192}")
        e(f"s_mul_i32 {sr(sOff)}, {sr(sRB)}, {GRP}")
        e(f"s_mul_i32 {sr(sT2)}, {sr(sTo)}, {TILE}")
        e(f"s_add_u32 {sr(sOff)}, {sr(sOff)}, {sr(sT2)}")
        e(f"s_and_b32 {sr(sT2)}, {sr(sW)}, 1")
        e(f"s_mul_i32 {sr(sT2)}, {sr(sT2)}, 14336")
        e(f"s_add_u32 {sr(sOff)}, {sr(sOff)}, {sr(sT2)}")
        e(f"s_add_u32 {sr(sOff)}, {sr(sOff)}, {WS_O + self.buf(0x200000, layer)}")
        self.poll(vFlagO, sT1)
        self.stamp(f"o{layer + 1}_seen")
        D = self.o.odepth
        def oload(s):
            if s and s % 4 == 0:
                e(f"s_add_u32 {sr(sOff)}, {sr(sOff)}, 4096")
            e(f"buffer_load_dwordx4 {ar(aXF + 4 * s, 4)}, {vr(vL16)}, {sr(rWS, 4)}, {sr(sOff)} offen offset:{(s & 3) * 1024} sc1")
        for s in range(min(D, 14)):
            oload(s)
        for s in range(14):
            if s + D < 14:
                oload(s + D)
            nxt = wreads(s + 1) if s < 13 else [[]] * 4
            for ct in range(4):
                e(self.mfma16(vRes + 4 * ct, vr(wf + 16 * (s & 1) + 4 * ct, 4), ar(aXF + 4 * s, 4), vr(vRes + 4 * ct, 4)))
                self.emit(nxt[ct])
        X = vWf
        self.emit(self.cvt(X, vRes, 8))
        for q in (0, 4):
            e(f"v_permlane16_swap_b32 {vr(X + q)}, {vr(X + q + 2)}")
            e(f"v_permlane16_swap_b32 {vr(X + q + 1)}, {vr(X + q + 3)}")
        if layer == 3:
            e(f"buffer_store_dwordx4 {vr(X, 4)}, {vr(vOut)}, {sr(rOut, 4)}, 0 offen")
            e(f"buffer_store_dwordx4 {vr(X + 4, 4)}, {vr(vOut)}, {sr(rOut, 4)}, 0 offen offset:64")
            a.label(lskip)
            return
        e(f"s_mul_i32 {sr(sOff)}, {sr(sRB)}, {GRP}")
        e(f"s_add_u32 {sr(sOff)}, {sr(sOff)}, {WS_X + self.buf(0x200000, layer)}")
        toks = self.mode_ops([f"buffer_store_dwordx4 {vr(X, 4)}, {vr(vXst)}, {sr(rWS, 4)}, {sr(sOff)} offen",
                              f"buffer_store_dwordx4 {vr(X + 4, 4)}, {vr(vXst)}, {sr(rWS, 4)}, {sr(sOff)} offen offset:2048"])
        s2, q2 = vT, vT + 2
        e(self.pk("add", s2, vRes, vRes + 2))
        e(self.pk("mul", q2, vRes, vRes))
        e(self.pk("fma", q2, vRes + 2, vRes + 2, q2))
        for i in range(2, 8):
            e(self.pk("add", s2, s2, vRes + 2 * i))
            e(self.pk("fma", q2, vRes + 2 * i, vRes + 2 * i, q2))
        e(f"v_add_f32 {vr(s2)}, {vr(s2)}, {vr(s2 + 1)}")
        e(f"v_add_f32 {vr(q2)}, {vr(q2)}, {vr(q2 + 1)}")
        e(f"s_lshl_b32 {sr(sT2)}, {sr(sRB)}, 13")
        e(f"s_add_u32 {sr(sT2)}, {sr(sT2)}, {WS_STAT + layer * 0x20000}")
        self.emit(self.row_reduce(s2, q2))
        toks += self.mode_ops([f"buffer_store_dword {vr(s2)}, {vr(vStatSt)}, {sr(rWS, 4)}, {sr(sT2)} offen"])
        e(f"s_lshl_b32 {sr(sT1)}, {sr(sRB)}, 2")
        e(f"s_add_u32 {sr(sT1)}, {sr(sT1)}, {sr(sTo)}")
        e(f"s_lshl_b32 {sr(sT1)}, {sr(sT1)}, 7")
        e(f"s_lshl_b32 {sr(sT2)}, {sr(sCG)}, 1")
        e(f"s_and_b32 {sr(sT3)}, {sr(sW)}, 1")
        e(f"s_add_u32 {sr(sT2)}, {sr(sT2)}, {sr(sT3)}")
        e(f"s_lshl_b32 {sr(sT2)}, {sr(sT2)}, 2")
        e(f"s_add_u32 {sr(sT1)}, {sr(sT1)}, {sr(sT2)}")
        e(f"s_add_u32 {sr(sT1)}, {sr(sT1)}, {WS_FX + layer * 8192}")
        a.wait(*toks)
        self.flag_store(sT1)
        if layer == 1:
            e(f"buffer_store_dwordx4 {vr(X, 4)}, {vr(vHaloX)}, {sr(rWS, 4)}, 0 offen sc1")
            e(f"buffer_store_dwordx4 {vr(X + 4, 4)}, {vr(vHaloX)}, {sr(rWS, 4)}, 0 offen offset:512 sc1")
            e(f"buffer_store_dword {vr(s2)}, {vr(vHaloStSt)}, {sr(rWS, 4)}, 0 offen sc1")
            e("s_nop 1")
        a.label(lskip)
        self.stamp(f"x{layer + 1}_pub")

    def gemm(self, layer):
        e, a = self.e, self.a
        isA = layer == 2
        tiles = [(0, vAq, False), (1, vAk, False), (2, vAv, True)] if isA else [(1, vAk, False), (2, vAv, True)]
        coff = 0 if isA else 384
        def wbuf(s, i):
            return vWf + 12 * (s & 1) + 4 * i
        for i, (seg, _, _) in enumerate(tiles):
            self.emit(self.w_tr(wbuf(0, i), seg, 0))
        e(f"s_lshl_b32 {sr(sT1)}, {sr(sRB)}, 2")
        e(f"s_add_u32 {sr(sT1)}, {sr(sT1)}, {sr(sW)}")
        e(f"s_lshl_b32 {sr(sT1)}, {sr(sT1)}, 7")
        e(f"s_add_u32 {sr(sT1)}, {sr(sT1)}, {WS_FX + (layer - 1) * 8192}")
        e(f"s_mul_i32 {sr(sOff)}, {sr(sRB)}, {GRP}")
        e(f"s_mul_i32 {sr(sT2)}, {sr(sW)}, {TILE}")
        e(f"s_add_u32 {sr(sOff)}, {sr(sOff)}, {sr(sT2)}")
        e(f"s_add_u32 {sr(sOff)}, {sr(sOff)}, {WS_X + self.buf(0x200000, layer - 1)}")
        e(f"s_lshl_b32 {sr(sT2)}, {sr(sRB)}, 13")
        e(f"s_add_u32 {sr(sT2)}, {sr(sT2)}, {WS_STAT + (layer - 1) * 0x20000}")
        self.poll(vFlagX, sT1)
        self.stamp(f"x{layer}_seen")
        D = self.o.xdepth
        assert 4 <= D <= 13
        def xload(s):
            if s and s % 4 == 0:
                e(f"s_add_u32 {sr(sOff)}, {sr(sOff)}, 4096")
            e(f"buffer_load_dwordx4 {ar(aXF + 4 * s, 4)}, {vr(vL16)}, {sr(rWS, 4)}, {sr(sOff)} offen offset:{(s & 3) * 1024} sc1")
        st = vAt
        xload(0)
        xload(1)
        for q in range(4):
            e(f"buffer_load_dwordx2 {vr(st + 2 * q, 2)}, {vr(vStatLd3 if q == 3 else vStatLd)}, {sr(rWS, 4)}, {sr(sT2)} offen offset:{512 * q} sc1")
        for s in range(2, D):
            xload(s)
        fill = {}
        def add(step, lst):
            fill.setdefault(step, []).extend(lst)
        S, Q = vT + 10, vT + 11
        add(2, [f"v_add_f32 {vr(S)}, {vr(st)}, {vr(st + 2)}", f"v_add_f32 {vr(Q)}, {vr(st + 1)}, {vr(st + 3)}",
                f"v_add_f32 {vr(st + 4)}, {vr(st + 4)}, {vr(st + 6)}", f"v_add_f32 {vr(st + 5)}, {vr(st + 5)}, {vr(st + 7)}"])
        add(3, [f"v_add_f32 {vr(S)}, {vr(S)}, {vr(st + 4)}", f"v_add_f32 {vr(Q)}, {vr(Q)}, {vr(st + 5)}",
                f"v_mov_b32 {vr(vT)}, {vr(S)}", f"v_mov_b32 {vr(vT + 1)}, {vr(Q)}"])
        add(4, [f"v_permlane32_swap_b32 {vr(S)}, {vr(vT)}", f"v_permlane32_swap_b32 {vr(Q)}, {vr(vT + 1)}",
                f"v_add_f32 {vr(S)}, {vr(S)}, {vr(vT)}", f"v_add_f32 {vr(Q)}, {vr(Q)}, {vr(vT + 1)}"])
        fin = self.stats_finish(S, Q, self.tA, self.tB)
        add(5, fin[:4])
        add(6, fin[4:])
        add(7, self.stats_publish())
        rb = self.stats_readback()
        add(8, rb[:4])
        add(9, rb[4:])
        if layer != 1:
            cr = self.c_reads(coff, q=isA)
            add(10, cr[:5])
            add(11, cr[5:])
            work = (self.q_scalars() if isA else []) + self.scale16(vBk, self.tB, False) + self.scale16(vBv, self.tCv, False)
            if isA:
                work += self.scale16(vBq, self.tBq, False)
            per = 4
            for i in range(0, len(work), per):
                add(12 + i // per, work[i:i + per])
        sw = vT + 20
        halo_toks = []
        for s in range(28):
            if s + D < 28:
                xload(s + D)
            elif isA:
                k = s + D - 28
                if k == 0:
                    for j in range(14):
                        if j == 8:
                            e(f"s_mov_b32 {sr(sT3)}, 4096")
                        so = "0" if j < 8 else sr(sT3)
                        halo_toks.append(e(f"buffer_load_dwordx4 {ar(aHF + 4 * j, 4)}, {vr(vHaloLd)}, {sr(rWS, 4)}, {so} offen offset:{(j & 7) * 512} sc1"))
                    self.halo_stat_loads = [
                        f"buffer_load_dwordx2 {vr(vT + 12, 2)}, {vr(vHaloStLd)}, {sr(rWS, 4)}, 0 offen sc1",
                        f"buffer_load_dwordx2 {vr(vT + 14, 2)}, {vr(vT + 20)}, {sr(rWS, 4)}, 0 offen offset:256 sc1"]
                    e(f"v_mov_b32 {vr(vT + 20)}, {OOB}")
                    e(f"s_mov_b32 {sr(sM)}, 0")
                    e(f"s_mov_b32 {sr(sM + 1)}, 0xffff0000")
                    e(f"v_cndmask_b32_e64 {vr(vT + 20)}, {vr(vHaloStLd)}, {vr(vT + 20)}, {sr(sM, 2)}")
                    halo_toks += [e(t) for t in self.halo_stat_loads]
                elif k == 1:
                    for j in range(14):
                        self.wo_dma(rWoA, j)
            if s == 14:
                a.barrier()
            x = ar(aXF + 4 * s, 4)
            fl = list(fill.get(s, []))
            n = len(tiles)
            for i, (seg, acc, swp) in enumerate(tiles):
                w = vr(wbuf(s, i), 4)
                c = "0" if s == 0 else vr(acc, 16)
                e(self.mfma32(acc, x, w, c) if swp else self.mfma32(acc, w, x, c))
                if s < 27:
                    self.emit(self.w_tr(wbuf(s + 1, i), seg, s + 1))
                take = -(-len(fl) // (n - i))
                self.emit(fl[:take])
                fl = fl[take:]
            if layer == 1:
                if s % 2 == 0:
                    self.emit(self.side_tr(sw, vSide, s >> 1))
                else:
                    e(self.mfma16(self.hC, vr(sw, 4), vr(vOnes, 4), "0" if s == 1 else vr(self.hC, 4)))
        for s in sorted(fill):
            if s >= 28:
                self.emit(fill[s])
        if isA:
            self.halo_tile(halo_toks)
        if layer == 1:
            e(f"s_mov_b64 exec, {sr(sMaskC, 2)}")
            e(f"ds_write_b128 {vr(vCh)}, {vr(self.hC, 4)} offset:384")
            e("s_mov_b64 exec, -1")
            a.barrier()
            self.emit(self.c_reads(coff, q=False))
            self.emit(self.scale16(vBk, self.tB, True) + self.scale16(vBv, self.tCv, True))
        self.stamp(f"gemm{layer + 1}")

    def halo_tile(self, toks):
        e, a = self.e, self.a
        hs = vT + 12
        lr, lo = a.newlabel("Lhaloretry"), a.newlabel("Lhalook")
        sw = (vWf, vWf + 4)
        self.emit(self.side_tr(sw[0], vSide, 0))
        e(f"ds_read_b128 {vr(self.hC, 4)}, {vr(vCh)}")
        a.wait(*toks)
        chk = []
        for j in range(14):
            chk.append(f"v_accvgpr_read_b32 {vr(vWf + 8 + j)}, {ar(aHF + 4 * j + 3)}")
        chk.append(f"v_max3_u32 {vr(vT)}, {vr(hs)}, {vr(hs + 1)}, {vr(hs + 2)}")
        chk.append(f"v_max_u32 {vr(vT + 1)}, {vr(hs + 3)}, {vr(vWf + 8)}")
        for j in range(1, 13, 4):
            chk.append(f"v_max3_u32 {vr(vT)}, {vr(vT)}, {vr(vWf + 8 + j)}, {vr(vWf + 9 + j)}")
            chk.append(f"v_max3_u32 {vr(vT + 1)}, {vr(vT + 1)}, {vr(vWf + 10 + j)}, {vr(vWf + 11 + j)}")
        chk.append(f"v_max3_u32 {vr(vT)}, {vr(vT)}, {vr(vT + 1)}, {vr(vWf + 21)}")
        chk.append(f"v_cmp_eq_u32 vcc, -1, {vr(vT)}")
        self.emit(chk)
        e(f"s_cbranch_vccnz {lr}")
        a.label(lo)
        tail = [lr + ":", f"    s_mov_b32 {sr(sT3)}, 4096"]
        for j in range(14):
            so = "0" if j < 8 else sr(sT3)
            tail.append(f"    buffer_load_dwordx4 {ar(aHF + 4 * j, 4)}, {vr(vHaloLd)}, {sr(rWS, 4)}, {so} offen offset:{(j & 7) * 512} sc1")
        tail += ["    " + t for t in self.halo_stat_loads]
        tail.append("    s_waitcnt vmcnt(0)")
        tail += ["    " + t for t in chk]
        tail += [f"    s_cbranch_vccz {lo}", f"    s_sub_u32 {sr(sBud)}, {sr(sBud)}, 1", f"    s_cbranch_scc0 {lr}",
                 f"    s_mov_b32 {sr(sBud)}, 0", f"    s_branch {lo}"]
        a.tail += tail
        S, Q = vT + 10, vT + 11
        e(f"v_add_f32 {vr(S)}, {vr(hs)}, {vr(hs + 2)}")
        e(f"v_add_f32 {vr(Q)}, {vr(hs + 1)}, {vr(hs + 3)}")
        fl = self.halo_stats(S, Q)
        for j in range(14):
            if j < 13:
                self.emit(self.side_tr(sw[(j + 1) & 1], vSide, j + 1))
            e(self.mfma16(self.hAcc, vr(sw[j & 1], 4), ar(aHF + 4 * j, 4), "0" if j == 0 else vr(self.hAcc, 4)))
            self.emit(fl[:1])
            fl = fl[1:]
        self.emit(fl)

    def feature_map(self, src, P, E2, dst):
        r = [self.mfma32(P, vr(vPhi, 4), vr(src, 4), "0"), self.mfma32(P, vr(vPhi + 4, 4), vr(src + 4, 4), vr(P, 16))]
        mx, mn, t0, t1 = vT, vT + 1, vT + 10, vT + 11
        real = [0, 1, 2, 3, 4, 5, 6, 8, 9, 10, 11, 12, 13, 14]
        r.append(f"v_max3_f32 {vr(mx)}, {vr(P)}, {vr(P + 1)}, {vr(P + 2)}")
        r.append(f"v_min3_f32 {vr(mn)}, {vr(P)}, {vr(P + 1)}, {vr(P + 2)}")
        for i in range(3, 13, 2):
            r.append(f"v_max3_f32 {vr(mx)}, {vr(mx)}, {vr(P + real[i])}, {vr(P + real[i + 1])}")
            r.append(f"v_min3_f32 {vr(mn)}, {vr(mn)}, {vr(P + real[i])}, {vr(P + real[i + 1])}")
        r.append(f"v_max_f32 {vr(mx)}, {vr(mx)}, {vr(P + 14)}")
        r.append(f"v_min_f32 {vr(mn)}, {vr(mn)}, {vr(P + 14)}")
        r += [f"v_mov_b32 {vr(t0)}, {vr(mx)}", f"v_mov_b32 {vr(t1)}, {vr(mn)}",
              f"s_mov_b32 {sr(sK)}, {f32(LOG2E)}", f"s_mov_b32 {sr(sK + 1)}, {f32(LOG2E)}",
              f"v_permlane32_swap_b32 {vr(mx)}, {vr(t0)}", f"v_permlane32_swap_b32 {vr(mn)}, {vr(t1)}",
              f"v_max_f32 {vr(mx)}, {vr(mx)}, {vr(t0)}", f"v_min_f32 {vr(mn)}, {vr(mn)}, {vr(t1)}",
              f"v_mul_f32 {vr(mx)}, {sr(sK)}, {vr(mx)}", f"v_mul_f32 {vr(mn)}, {sr(sK)}, {vr(mn)}"]
        for i in range(0, 16, 2):
            r.append(self.pk("fma", E2 + i, P + i, sr(sK, 2), mn, bc=(2,), neg=(0,)))
            r.append(self.pk("fma", P + i, P + i, sr(sK, 2), mx, bc=(2,), neg=(2,)))
        for i in real:
            r.append(f"v_exp_f32 {vr(P + i)}, {vr(P + i)}")
            r.append(f"v_exp_f32 {vr(E2 + i)}, {vr(E2 + i)}")
        sp, sn = vT + 12, vT + 14
        r += [self.pk("add", sp, P, P + 2), self.pk("add", sn, E2, E2 + 2)]
        for i in (4, 8, 10, 12):
            r += [self.pk("add", sp, sp, P + i), self.pk("add", sn, sn, E2 + i)]
        r += [f"v_add_f32 {vr(sp)}, {vr(sp)}, {vr(sp + 1)}", f"v_add_f32 {vr(sn)}, {vr(sn)}, {vr(sn + 1)}",
              f"v_add_f32 {vr(t0)}, {vr(P + 6)}, {vr(P + 14)}", f"v_add_f32 {vr(t1)}, {vr(E2 + 6)}, {vr(E2 + 14)}",
              f"v_add_f32 {vr(sp)}, {vr(sp)}, {vr(t0)}", f"v_add_f32 {vr(sn)}, {vr(sn)}, {vr(t1)}",
              f"v_mov_b32 {vr(t0)}, {vr(sp)}", f"v_mov_b32 {vr(t1)}, {vr(sn)}", "s_nop 0",
              f"v_permlane32_swap_b32 {vr(sp)}, {vr(t0)}", f"v_permlane32_swap_b32 {vr(sn)}, {vr(t1)}",
              f"v_add_f32 {vr(sp)}, {vr(sp)}, {vr(t0)}", f"v_add_f32 {vr(sn)}, {vr(sn)}, {vr(t1)}",
              f"v_rcp_f32 {vr(sp)}, {vr(sp)}", f"v_rcp_f32 {vr(sn)}, {vr(sn)}"]
        for base, s, d in ((P, sp, dst), (E2, sn, dst + 8)):
            for i in range(8):
                r.append(self.pk("mul", base + 2 * i, base + 2 * i, s, bc=(1,)))
            for i in range(8):
                hi = "0" if i in (3, 7) else vr(base + 2 * i + 1)
                r.append(f"v_cvt_pk_bf16_f32 {vr(d + i)}, {vr(base + 2 * i)}, {hi}")
        return r

    def linear_attention(self, layer):
        e, a = self.e, self.a
        Kf, Vf = vWf, vWf + 8
        self.emit(self.correct(vAk, self.tA, vBk))
        self.emit(self.cvt(Kf, vAk, 8))
        fm = self.feature_map(Kf, vAk, vBk, vBq)
        self.emit(fm[:2])
        self.emit(self.v_frags(Vf))
        e(f"ds_write_b128 {vr(vVfW)}, {vr(Vf, 4)}")
        e(f"ds_write_b128 {vr(vVfW)}, {vr(Vf + 4, 4)} offset:1024")
        self.emit(fm[2:])
        for f in range(4):
            e(f"ds_write_b128 {vr(vPkW)}, {vr(vBq + 4 * f, 4)} offset:{32 * f}")
        a.barrier()
        A, B, acc = vAt, vAk, vT + 12
        for T in range(4):
            e(f"ds_read_b64_tr_b16 {vr(A + 4 * T, 2)}, {vr(vPkR)} offset:{T * 32 * PKROW}")
            e(f"ds_read_b64_tr_b16 {vr(A + 4 * T + 2, 2)}, {vr(vPkR)} offset:{T * 32 * PKROW + 8 * PKROW}")
            for dh in range(2):
                e(f"ds_read_b128 {vr(B + 8 * T + 4 * dh, 4)}, {vr(vVfR)} offset:{T * 2048 + dh * 256}")
        kvl = (layer - 1) // 2
        e(f"s_lshl_b32 {sr(sOff)}, {sr(sH)}, 2")
        e(f"s_add_u32 {sr(sOff)}, {sr(sOff)}, {sr(sW)}")
        e(f"s_lshl_b32 {sr(sOff)}, {sr(sOff)}, 14")
        e(f"s_add_u32 {sr(sOff)}, {sr(sOff)}, {WS_KV + kvl * 0x100000}")
        e(f"s_lshl_b32 {sr(sT1)}, {sr(sRB)}, 10")
        e(f"s_add_u32 {sr(sT1)}, {sr(sT1)}, {sr(sOff)}")
        tg = vT + 10
        e(f"v_mov_b32 {vr(tg)}, {sr(sTag16)}")
        for T in range(4):
            for dh in range(2):
                e(self.mfma16(acc + 4 * dh, vr(A + 4 * T, 4), vr(B + 8 * T + 4 * dh, 4), "0" if T == 0 else vr(acc + 4 * dh, 4)))
        G = vWf
        self.emit(self.cvt(G, acc, 4))
        e(f"v_permlane16_swap_b32 {vr(G)}, {vr(G + 2)}")
        e(f"v_permlane16_swap_b32 {vr(G + 1)}, {vr(G + 3)}")
        e(f"v_mov_b32_sdwa {vr(G + 3)}, {vr(tg)} dst_sel:WORD_1 dst_unused:UNUSED_PRESERVE src0_sel:WORD_0")
        e("s_nop 0")
        e(f"buffer_store_dwordx4 {vr(G, 4)}, {vr(vL16)}, {sr(rWS, 4)}, {sr(sT1)} offen sc1")
        self.stamp(f"kv{layer + 1}_pub")
        a.barrier()
        for j in range(14):
            self.wo_dma(rWoB, j)
        wq = vWf + 8
        self.emit(self.w_tr(wq, 0, 0))
        if layer != 1:
            self.emit(self.c_reads(384, kv=False))
        sw = vT + 20
        for s in range(28):
            w = vr(wq + 4 * (s & 1), 4)
            e(self.mfma32(vAq, w, ar(aXF + 4 * s, 4), "0" if s == 0 else vr(vAq, 16)))
            if s < 27:
                self.emit(self.w_tr(wq + 4 * ((s + 1) & 1), 0, s + 1))
            if layer == 1:
                if s % 2 == 0:
                    self.emit(self.side_tr(sw, vSideQ, s >> 1))
                else:
                    e(self.mfma16(self.hC, vr(sw, 4), vr(vOnes, 4), "0" if s == 1 else vr(self.hC, 4)))
            elif 4 <= s < 12:
                i = 2 * (s - 4)
                e(f"v_mul_f32 {vr(vBq + i)}, {vr(self.tB)}, {vr(vBq + i)}")
                e(f"v_mul_f32 {vr(vBq + i + 1)}, {vr(self.tB)}, {vr(vBq + i + 1)}")
        L = vBk
        def kreg(r):
            return (L + 4 * r) if r < 12 else (vAv + 4 * (r - 12))
        loads = []
        for r in range(16):
            if r % 4 == 0:
                loads.append(f"s_add_u32 {sr(sT1)}, {sr(sOff)}, {r * 1024}")
            loads.append(f"buffer_load_dwordx4 {vr(kreg(r), 4)}, {vr(vL16)}, {sr(rWS, 4)}, {sr(sT1)} offen offset:{(r & 3) * 1024} sc1")
        self.emit(loads)
        if layer == 1:
            e(f"s_lshr_b32 {sr(sT1)}, {sr(sW)}, 1")
            e(f"s_add_u32 {sr(sT1)}, {sr(sT1)}, 1")
            e(f"s_lshl_b32 {sr(sT1)}, {sr(sT1)}, 7")
            e(f"v_subrev_u32 {vr(vT)}, {sr(sT1)}, {vr(vCh)}")
            e(f"s_mov_b64 exec, {sr(sMaskC, 2)}")
            e(f"ds_write_b128 {vr(vT)}, {vr(self.hC, 4)} offset:384")
            e("s_mov_b64 exec, -1")
            a.barrier()
            self.emit(self.c_reads(384, kv=False))
            self.emit(self.scale16(vBq, self.tB, True))
        self.emit(self.correct(vAq, self.tA, vBq))
        self.emit(self.cvt(vWf, vAq, 8))
        PQ = vWf + 8
        self.emit(self.feature_map(vWf, vAq, vBq, PQ))
        self.stamp(f"q{layer + 1}_done")
        lc, lo = a.newlabel("Lkvcheck"), a.newlabel("Lkvok")
        e(f"v_mov_b32 {vr(tg)}, {sr(sTag16)}")
        e(f"s_mov_b64 {sr(sAcc, 2)}, 0")
        e("s_nop 4")
        a.label(lc)
        R = vAk
        for r in range(16):
            e(self.mfma32(R, vr(vSel, 4), vr(kreg(r), 4), "0" if r == 0 else vr(R, 16)))
            e(f"v_cmp_ne_u16_sdwa vcc, {vr(kreg(r) + 3)}, {vr(tg)} src0_sel:WORD_1 src1_sel:WORD_0")
            e(f"s_or_b64 {sr(sAcc, 2)}, {sr(sAcc, 2)}, vcc")
        lr = a.newlabel("Lkvretry")
        e(f"s_cmp_lg_u64 {sr(sAcc, 2)}, 0")
        e(f"s_cbranch_scc1 {lr}")
        a.label(lo)
        a.tail += [lr + ":", f"    s_sub_u32 {sr(sBud)}, {sr(sBud)}, 1", f"    s_cbranch_scc0 {lr}_go",
                   f"    s_mov_b32 {sr(sBud)}, 0", f"    s_branch {lo}", f"{lr}_go:", "    s_nop 7"]
        a.tail += ["    " + t for t in loads]
        a.tail += [f"    s_mov_b64 {sr(sAcc, 2)}, 0", f"    s_branch {lc}"]
        self.stamp(f"kv{layer + 1}_in")
        for i in range(4):
            hi = "0" if i == 3 else vr(R + 2 * i + 1)
            e(f"v_cvt_pk_bf16_f32 {vr(vWf + i)}, {vr(R + 2 * i)}, {hi}")
        e(f"ds_write_b128 {vr(vKvW)}, {vr(vWf, 4)}")
        a.barrier()
        for f in range(4):
            e(f"ds_read_b128 {vr(vBq + 4 * f, 4)}, {vr(vKvR)} offset:{1024 * f}")
        if layer == 3:
            e(f"s_or_b32 {sr(sT1)}, s2, {sr(sW)}")
            e(f"s_cmp_eq_u32 {sr(sT1)}, 0")
            e(f"s_cselect_b32 {sr(sT1)}, {WS_E}, {OOB}")
            e("s_mov_b64 exec, 1")
            e(f"buffer_store_dword {vr(vTag)}, off, {sr(rWS, 4)}, {sr(sT1)} sc1")
            e("s_mov_b64 exec, -1")
        for f in range(4):
            e(self.mfma32(vAv, vr(vBq + 4 * f, 4), vr(PQ + 4 * f, 4), "0" if f == 0 else vr(vAv, 16)))
        self.publish_o(layer, vAv, 1e-6)
        self.stamp(f"o{layer + 1}_pub")

    def finish(self):
        e, a = self.e, self.a
        a.label("L_fin")
        if self.o.prof:
            self.stamp("end")
            a.force("s_waitcnt vmcnt(0) lgkmcnt(0)")
            e(f"v_mov_b32 {vr(vT)}, 0")
            for i in range(self.nstamp):
                src = sStamp + 4 + i if i < self.nstamp - 2 else sStamp + 2 * (i & 1)
                e(f"v_writelane_b32 {vr(vT)}, {sr(src)}, {i}")
            e(f"v_writelane_b32 {vr(vT)}, s100, 62")
            e(f"v_writelane_b32 {vr(vT)}, {sr(sBud)}, 63")
            e(f"v_writelane_b32 {vr(vT)}, {sr(sSlow)}, 61")
            e(f"v_writelane_b32 {vr(vT)}, {sr(sXcc)}, 60")
            e(f"s_lshl_b32 {sr(sT0)}, s2, 2")
            e(f"s_add_u32 {sr(sT0)}, {sr(sT0)}, {sr(sW)}")
            e(f"s_lshl_b32 {sr(sT0)}, {sr(sT0)}, 8")
            e(f"s_add_u32 {sr(sT0)}, {sr(sT0)}, {WS_DBG}")
            e(f"v_lshlrev_b32 {vr(vT + 1)}, 2, {vr(vL)}")
            e(f"buffer_store_dword {vr(vT)}, {vr(vT + 1)}, {sr(rWS, 4)}, {sr(sT0)} offen")
        a.label("L_end")
        e("s_endpgm")

    def build(self):
        o = self.o
        saved = o.prof
        def gate(layer):
            o.prof = saved and (layer in o.prof_layers)
        gate(0)
        self.prologue()
        self.gemm_l1()
        self.attention(0)
        for layer in range(4):
            gate(layer)
            if layer > 0:
                self.gemm(layer)
                if layer == 2:
                    self.attention(layer)
                else:
                    self.linear_attention(layer)
            if o.stop == 2 * layer:
                break
            self.between(layer)
            self.outproj(layer)
            if o.stop == 2 * layer + 1:
                break
        o.prof = saved
        self.finish()
        head = (f"; Persistent kernel: 256 workgroups = 16 row blocks x 16 heads, generated by a script.\n"
                f"; @launch grid=(256,1,1) block=(256,1,1) lds={LDS_BYTES}\n"
                '.amdgcn_target "amdgcn-amd-amdhsa--gfx950"\n.text\n'
                f".globl {KERNEL}\n.p2align 8\n.type {KERNEL},@function\n{KERNEL}:\n")
        foot = ("L_code_end:\n    s_endpgm\n"
                '.section .rodata,"a"\n.p2align 6\n'
                f".amdhsa_kernel {KERNEL}\n"
                "  .amdhsa_next_free_vgpr 512\n  .amdhsa_next_free_sgpr 102\n  .amdhsa_accum_offset 256\n"
                "  .amdhsa_group_segment_fixed_size 0\n  .amdhsa_kernarg_size 80\n"
                "  .amdhsa_user_sgpr_count 2\n  .amdhsa_user_sgpr_kernarg_segment_ptr 1\n"
                "  .amdhsa_system_sgpr_workgroup_id_x 1\n.end_amdhsa_kernel\n")
        return head + self.a.text() + foot


def main():
    p = argparse.ArgumentParser()
    p.add_argument("-o", "--out", default=f"cdna_kernels/{NAME}.s")
    p.add_argument("--sep", action="store_true", help="separate exchange buffers per layer (debug)")
    p.add_argument("--prof", action="store_true")
    p.add_argument("--prof-layers", default="0,1,2,3")
    p.add_argument("--skip", default="q4_done")
    p.add_argument("--stop", type=int, default=-1)
    p.add_argument("--force-slow", action="store_true")
    p.add_argument("--xdepth", type=int, default=10)
    p.add_argument("--odepth", type=int, default=10)
    o = p.parse_args()
    o.prof_layers = [int(x) for x in o.prof_layers.split(",")]
    o.skip = o.skip.split(",")
    g = Gen(o)
    txt = g.build()
    open(o.out, "w").write(txt)
    if o.prof:
        open(o.out + ".stamps", "w").write(",".join(g.stamp_names))
    print("wrote", o.out, len(txt), "bytes of text;", sum(1 for k, _ in g.a.lines if k == "i"), "instructions")


if __name__ == "__main__":
    main()
```

```python
import argparse, math, struct
from asmlib import Asm, vr, ar, sr

NAME = "interleave_layers__sliding_local_dilated__linear_kernel_hedgehog__prompt"
KERNEL = NAME + "_kernel"

WO = 0
WQ = 57344
SEG = 28672
SCR = 143376
CA = SCR
CB = SCR + 384
KVS = SCR + 768
ST = SCR + 5888
HST = SCR + 6912
PHI = HST
KVR = SCR + 15104
LDS_BYTES = 163840
PKIMG = WO
PKROW = 144
VIMG = WO + 128 * PKROW

WS_E = 0
WS_TAB = 4096
WS_FO = 8192
WS_FX = 8192 + 32768
WS_STAT = 0x20000
WS_HALO = 0xA0000
WS_KV = 0x100000
WS_O = 0x400000
WS_X = 0xC00000
WS_DBG = 0x1400000
WS_BYTES = 0x10000000
OOB = 0x40000000
GRP = 114688
TILE = 28672

sX, sP, sH, sW, sRB, sTag, sSlow, sBud = 4, 5, 6, 7, 8, 9, 10, 11
sT0, sT1, sT2, sT3 = 12, 13, 14, 15
sPC = 16
sPad = 18
sMaskC = 20
sTag16, sTo = 22, 23
rX0, rWA, rWoA, rWB, rPhi, rWoB, rOut, rWS = 24, 28, 32, 36, 40, 44, 48, 52
sOff, sCG, sRing, sWdst = 56, 57, 58, 59
sWsrc, sXcc, sHalf = 60, 61, 62
sK = 64
sM = 66
sWoSrc, sAcc = 68, 70
sStamp = 72

vL, vL16, vWb0, vWb2, vSide, vSideQ = 0, 1, 2, 3, 4, 5
vWo = 6
vOst = 10
vXst, vStatSt, vStatLd, vStatLd3, vFlagO, vFlagX = 14, 15, 16, 17, 18, 19
vWoD, vWD, vKsl, vVsl, vStW, vStR, vCq, vCv, vPadC, vTag, vHaloW = 20, 22, 23, 24, 25, 26, 27, 28, 29, 30, 31
vRes = 32
vBias = 48
vPhi = 68
vSel = 76
vOnes = 80
vHaloX, vHaloLd, vHaloStLd, vHaloStSt = 84, 85, 86, 87
vPkW, vVfW, vPkR, vVfR, vKvW, vKvR, vCh, vOut = 88, 89, 90, 91, 92, 93, 94, 95
vAq, vAk, vAv = 96, 112, 128
vWf = 144
vBq, vBk, vAt, vBv = 168, 184, 200, 216
vT = 232
aXF = 0
aST = 112
aHF = 200


def f32(x):
    return "0x%08x" % struct.unpack("<I", struct.pack("<f", x))[0]


LOG2E = math.log2(math.e)
QSCALE = 28 ** -0.5 * LOG2E
NEG = -1.0e30


class Gen:
    def __init__(self, opt):
        self.o = opt
        self.a = Asm()
        self.nstamp = 0
        self.stamp_names = []

    def e(self, t):
        return self.a.e(t)

    def stamp(self, name):
        if self.o.diag == name:
            self.e(f"s_memtime {sr(sStamp, 2)}")
        if not self.o.prof or name in self.o.skip:
            return
        assert self.nstamp < 26, "too many stamps"
        pair = sStamp + 2 * (self.nstamp & 1)
        if self.nstamp >= 2:
            self.e(f"s_mov_b32 {sr(sStamp + 4 + self.nstamp - 2)}, {sr(pair)}")
        self.e(f"s_memtime {sr(pair, 2)}")
        self.stamp_names.append(name)
        self.nstamp += 1

    def buf(self, layer_stride, layer):
        return layer_stride * layer if self.o.sep else 0

    def pk(self, op, d, *src, bc=(), neg=()):
        n = len(src)
        ops, lo, hi = [], [], []
        for i, s in enumerate(src):
            if isinstance(s, str):
                ops.append(s)
                lo.append(0)
                hi.append(0 if i in bc else 1)
            elif i in bc:
                ops.append(vr(s & ~1, 2))
                lo.append(s & 1)
                hi.append(s & 1)
            else:
                assert s % 2 == 0
                ops.append(vr(s, 2))
                lo.append(0)
                hi.append(1)
        t = f"v_pk_{op}_f32 {vr(d, 2)}, " + ", ".join(ops)
        if any(lo):
            t += " op_sel:[" + ",".join(map(str, lo)) + "]"
        if not all(hi):
            t += " op_sel_hi:[" + ",".join(map(str, hi)) + "]"
        if neg:
            m = ",".join("1" if i in neg else "0" for i in range(n))
            t += f" neg_lo:[{m}] neg_hi:[{m}]"
        return t

    def mode_ops(self, ops):
        a = self.a
        ls, lj = a.newlabel("Lslow"), a.newlabel("Ljoin")
        self.e(f"s_cmp_lg_u32 {sr(sSlow)}, 0")
        self.e(f"s_cbranch_scc1 {ls}")
        start = len(a.lines)
        toks = [self.e(t) for t in ops]
        body = [p.text for k, p in a.lines[start:] if k == "i"]
        a.label(lj)
        a.tail.append(ls + ":")
        for t in body:
            a.tail.append("    " + t + (" sc1" if t.startswith("buffer_store") else ""))
        a.tail.append(f"    s_branch {lj}")
        return toks

    def poll(self, vflag, soff):
        a = self.a
        l0, l1 = a.newlabel("Lpoll"), a.newlabel("Ldone")
        a.label(l0)
        self.e(f"buffer_load_dword {vr(vT)}, {vr(vflag)}, {sr(rWS, 4)}, {sr(soff)} offen sc1")
        a.force("s_waitcnt vmcnt(0)")
        self.e(f"v_cmp_ne_u32 vcc, {sr(sTag)}, {vr(vT)}")
        self.e(f"s_cbranch_vccz {l1}")
        self.e(f"s_sub_u32 {sr(sBud)}, {sr(sBud)}, 1")
        self.e(f"s_cbranch_scc0 {l0}")
        self.e(f"s_mov_b32 {sr(sBud)}, 0")
        a.label(l1)

    def flag_store(self, soff):
        self.e("s_mov_b64 exec, 1")
        self.mode_ops([f"buffer_store_dword {vr(vTag)}, off, {sr(rWS, 4)}, {sr(soff)}"])
        self.e("s_mov_b64 exec, -1")

    def dma(self, vaddr, srd, m0_base, m0_imm, so_base, so_imm):
        if m0_base is None:
            self.e(f"s_mov_b32 m0, {m0_imm}")
        else:
            self.e(f"s_add_u32 m0, {sr(m0_base)}, {m0_imm}")
        if so_base is None:
            self.e(f"s_mov_b32 {sr(sT0)}, {so_imm}")
        else:
            self.e(f"s_add_u32 {sr(sT0)}, {sr(so_base)}, {so_imm}")
        return self.e(f"buffer_load_dwordx4 {vr(vaddr)}, {sr(srd, 4)}, {sr(sT0)} offen lds")

    def w_dma(self, srd, seg, c):
        return self.dma(vWD, srd, sWdst, seg * SEG + c * 4096, sWsrc, c * 172032 + seg * 896)

    def wo_dma(self, srd, j):
        return self.dma(vWoD + (j & 1), srd, sRing, j * 1024, sWoSrc, j * 7168)

    def w_tr(self, dst, seg, s):
        base = vWb2 if seg == 2 else vWb0
        off = (seg * SEG if seg < 2 else 0) + s * 1024
        return [f"ds_read_b64_tr_b16 {vr(dst, 2)}, {vr(base)} offset:{off}",
                f"ds_read_b64_tr_b16 {vr(dst + 2, 2)}, {vr(base)} offset:{off + 256}"]

    def side_tr(self, dst, base, s32):
        return [f"ds_read_b64_tr_b16 {vr(dst, 2)}, {vr(base)} offset:{s32 * 2048}",
                f"ds_read_b64_tr_b16 {vr(dst + 2, 2)}, {vr(base)} offset:{s32 * 2048 + 256}"]

    @staticmethod
    def mfma32(d, a, b, c):
        return f"v_mfma_f32_32x32x16_bf16 {vr(d, 16)}, {a}, {b}, {c}"

    @staticmethod
    def mfma16(d, a, b, c):
        return f"v_mfma_f32_16x16x32_bf16 {vr(d, 4)}, {a}, {b}, {c}"

    def both_halves(self, op, r, t):
        return [f"v_mov_b32 {vr(t)}, {vr(r)}", f"v_permlane32_swap_b32 {vr(r)}, {vr(t)}",
                f"{op} {vr(r)}, {vr(r)}, {vr(t)}"]

    def emit(self, lst):
        for t in lst:
            self.e(t)

    def prologue(self):
        e, a = self.e, self.a
        e("s_cmp_ge_u32 s2, 0x100")
        e("s_cbranch_scc1 L_end")
        for srd, off in ((rX0, 0), (rWA, 8), (rWS, 72), (rWoA, 16), (rWB, 32), (rPhi, 40), (rWoB, 48), (rOut, 56)):
            e(f"s_load_dwordx2 {sr(srd, 2)}, s[0:1], {off}")
        if self.o.prof:
            e("s_memrealtime s[100:101]")
        self.stamp("start")
        e(f"s_getpc_b64 {sr(sPC, 2)}")
        a.label("L_pc")
        e(f"v_lshrrev_b32 v2, 6, v0")
        e(f"v_and_b32 {vr(vL)}, 63, v0")
        e(f"v_readfirstlane_b32 {sr(sW)}, v2")
        e(f"s_sub_u32 {sr(sPC)}, {sr(sPC)}, L_pc-{KERNEL}")
        e(f"s_subb_u32 {sr(sPC + 1)}, {sr(sPC + 1)}, 0")
        e(f"v_lshlrev_b32 {vr(vL16)}, 4, {vr(vL)}")
        e(f"s_lshr_b32 {sr(sT0)}, s2, 3")
        e(f"s_lshl_b32 {sr(sT0)}, {sr(sT0)}, 2")
        e(f"s_add_u32 {sr(sT0)}, {sr(sT0)}, {sr(sW)}")
        e(f"s_lshl_b32 {sr(sT0)}, {sr(sT0)}, 10")
        e(f"v_add_u32 v2, {sr(sT0)}, {vr(vL16)}")
        e(f"v_min_u32 v2, L_code_end-{KERNEL}-16, v2")
        e(f"global_load_dwordx4 {vr(vT + 20, 4)}, v2, {sr(sPC, 2)}")
        e(f"s_and_b32 {sr(sX)}, s2, 7")
        e(f"s_bfe_u32 {sr(sP)}, s2, 0x10003")
        e(f"s_lshr_b32 {sr(sH)}, s2, 4")
        e(f"s_lshl_b32 {sr(sRB)}, {sr(sX)}, 1")
        e(f"s_or_b32 {sr(sRB)}, {sr(sRB)}, {sr(sP)}")
        e(f"s_lshr_b32 {sr(sCG)}, {sr(sH)}, 1")
        for srd, n in ((rX0, 1835008), (rWA, 1204224), (rWS, WS_BYTES), (rWoA, 401408), (rWB, 1204224),
                       (rPhi, 25088), (rWoB, 401408), (rOut, 1835008)):
            e(f"s_mov_b32 {sr(srd + 2)}, {n}")
            e(f"s_mov_b32 {sr(srd + 3)}, 0x20000")
        vXD, vHD, vRD = vT, vT + 1, vT + 2
        t0, t1, t2 = vT + 4, vT + 5, vT + 6
        e(f"s_lshl_b32 {sr(sT0)}, {sr(sX)}, 8")
        e(f"s_add_u32 {sr(sT0)}, {sr(sT0)}, {sr(sP)}")
        e(f"s_lshl_b32 {sr(sT1)}, {sr(sW)}, 6")
        e(f"s_add_u32 {sr(sT1)}, {sr(sT1)}, {sr(sT0)}")
        e(f"s_mul_i32 {sr(sT1)}, {sr(sT1)}, 896")
        e(f"v_lshrrev_b32 {vr(t0)}, 2, {vr(vL)}")
        e(f"v_lshrrev_b32 {vr(t1)}, 4, {vr(vL)}")
        e(f"v_xor_b32 {vr(t2)}, {vr(t1)}, {vr(vL)}")
        e(f"v_and_b32 {vr(t2)}, 3, {vr(t2)}")
        e(f"v_mul_u32_u24 {vr(vXD)}, 1792, {vr(t0)}")
        e(f"v_lshl_add_u32 {vr(vXD)}, {vr(t2)}, 4, {vr(vXD)}")
        e(f"v_add_u32 {vr(vXD)}, {sr(sT1)}, {vr(vXD)}")
        e(f"s_mul_i32 {sr(sT2)}, {sr(sH)}, 56")
        e(f"s_and_b32 {sr(sT3)}, {sr(sH)}, 1")
        e(f"s_lshl_b32 {sr(sT3)}, {sr(sT3)}, 3")
        e(f"s_sub_u32 {sr(sT2)}, {sr(sT2)}, {sr(sT3)}")
        e(f"v_and_b32 {vr(t2)}, 3, {vr(vL)}")
        e(f"v_mul_u32_u24 {vr(vWD)}, 2688, {vr(t0)}")
        e(f"v_lshl_add_u32 {vr(vWD)}, {vr(t2)}, 4, {vr(vWD)}")
        e(f"v_add_u32 {vr(vWD)}, {sr(sT2)}, {vr(vWD)}")
        e(f"s_mul_i32 {sr(sRing)}, {sr(sW)}, 14336")
        e(f"s_lshl_b32 {sr(sWdst)}, {sr(sW)}, 10")
        e(f"s_add_u32 {sr(sWdst)}, {sr(sWdst)}, {WQ}")
        e(f"s_mul_i32 {sr(sWsrc)}, {sr(sW)}, 43008")
        e(f"s_mul_i32 {sr(sWoSrc)}, {sr(sW)}, {14 * 7168}")
        e(f"s_sub_i32 {sr(sT1)}, {sr(sT0)}, 16")
        e(f"s_max_i32 {sr(sT1)}, {sr(sT1)}, 0")
        e(f"s_mul_i32 {sr(sT1)}, {sr(sT1)}, 896")
        e(f"s_lshl_b32 {sr(sT2)}, {sr(sW)}, 8")
        e(f"s_add_u32 {sr(sT1)}, {sr(sT1)}, {sr(sT2)}")
        e(f"v_and_b32 {vr(vHD)}, 7, {vr(t0)}")
        e(f"v_mul_u32_u24 {vr(vHD)}, 1792, {vr(vHD)}")
        e(f"v_lshl_add_u32 {vr(vHD)}, {vr(t2)}, 4, {vr(vHD)}")
        e(f"v_lshrrev_b32 {vr(t2)}, 5, {vr(vL)}")
        e(f"v_lshl_add_u32 {vr(vHD)}, {vr(t2)}, 6, {vr(vHD)}")
        e(f"v_add_u32 {vr(vHD)}, {sr(sT1)}, {vr(vHD)}")
        e(f"s_lshr_b32 {sr(sTo)}, {sr(sT3)}, 2")
        e(f"s_lshr_b32 {sr(sT1)}, {sr(sW)}, 1")
        e(f"s_add_u32 {sr(sTo)}, {sr(sTo)}, {sr(sT1)}")
        e(f"s_lshl_b32 {sr(sT1)}, {sr(sTo)}, 1")
        e(f"s_and_b32 {sr(sT2)}, {sr(sW)}, 1")
        e(f"s_add_u32 {sr(sT1)}, {sr(sT1)}, {sr(sT2)}")
        e(f"s_lshl_b32 {sr(sT1)}, {sr(sT1)}, 5")
        e(f"s_add_u32 {sr(sT1)}, {sr(sT1)}, {sr(sT0)}")
        e(f"s_mul_i32 {sr(sT1)}, {sr(sT1)}, 896")
        e(f"s_lshl_b32 {sr(sT2)}, {sr(sCG)}, 7")
        e(f"s_add_u32 {sr(sOff)}, {sr(sT1)}, {sr(sT2)}")
        e(f"v_lshrrev_b32 {vr(vRD)}, 3, {vr(vL)}")
        e(f"v_mul_u32_u24 {vr(vRD)}, 1792, {vr(vRD)}")
        e(f"v_and_b32 {vr(t2)}, 7, {vr(vL)}")
        e(f"v_lshl_add_u32 {vr(vRD)}, {vr(t2)}, 4, {vr(vRD)}")
        e(f"v_add_u32 {vr(vRD)}, {sr(sOff)}, {vr(vRD)}")
        a.force("s_waitcnt lgkmcnt(0)")
        self.tokE = e(f"buffer_load_dword {vr(vTag)}, off, {sr(rWS, 4)}, 0 sc1")
        self.vXD = vXD
        self.chunk_tok = {}
        self.l1_chunk(0)
        e(f"s_lshl_b32 {sr(sT3)}, {sr(sW)}, 11")
        self.dma(vHD, rX0, sT3, HST, None, 0)
        self.dma(vHD, rX0, sT3, HST + 1024, None, 128)
        self.dma(vRD, rX0, sRing, 12288, None, 0)
        tk = self.dma(vRD, rX0, sRing, 12288 + 1024, None, 8 * 1792)
        self.chunk_tok[0] = tk
        self.l1_chunk(1)
        self.l1_chunk(2)
        self.constants()

    def l1_chunk(self, c):
        for seg in range(3):
            self.w_dma(rWA, seg, c)
        for b in (2 * c, 2 * c + 1):
            for u in (0, 1):
                tk = self.dma(self.vXD, rX0, sRing, (b % 6) * 2048 + u * 1024, None, b * 64 + u * 28672)
        self.chunk_tok[c] = tk

    def constants(self):
        e, a = self.e, self.a
        t = [vT + 4 + i for i in range(12)]
        hh, t31, r4, c4, g, t15, tm = t[0:7]
        x, y, z = t[7:10]
        e(f"v_lshrrev_b32 {vr(hh)}, 5, {vr(vL)}")
        e(f"v_and_b32 {vr(t31)}, 31, {vr(vL)}")
        e(f"v_bfe_u32 {vr(r4)}, {vr(vL)}, 2, 2")
        e(f"v_and_b32 {vr(c4)}, 3, {vr(vL)}")
        e(f"v_lshrrev_b32 {vr(g)}, 4, {vr(vL)}")
        e(f"v_and_b32 {vr(t15)}, 15, {vr(vL)}")
        e(f"s_mov_b32 {sr(sBud)}, 0x40000")
        e(f"s_mov_b32 {sr(sHalf)}, 0")
        e(f"s_mov_b32 {sr(sHalf + 1)}, -1")
        e(f"s_mov_b32 {sr(sPad)}, 0xf0000000")
        e(f"s_mov_b32 {sr(sPad + 1)}, 0xf0000000")
        e(f"s_and_b32 {sr(sT3)}, {sr(sW)}, 1")
        e(f"s_mov_b32 {sr(sMaskC)}, 0x00010001")
        e(f"s_cmp_eq_u32 {sr(sT3)}, 0")
        e(f"s_cselect_b32 {sr(sMaskC + 1)}, 0x00010001, 1")
        e(f"s_and_b32 {sr(sT2)}, {sr(sH)}, 1")
        e(f"s_lshl_b32 {sr(sT2)}, {sr(sT2)}, 3")
        e(f"s_add_u32 {sr(sT2)}, {sr(sT2)}, {WQ}")
        e(f"v_lshl_add_u32 {vr(x)}, {vr(hh)}, 3, {vr(r4)}")
        e(f"v_lshlrev_b32 {vr(x)}, 6, {vr(x)}")
        e(f"v_and_b32 {vr(y)}, 1, {vr(g)}")
        e(f"v_lshl_add_u32 {vr(y)}, {vr(y)}, 2, {vr(c4)}")
        e(f"v_lshl_add_u32 {vr(x)}, {vr(y)}, 3, {vr(x)}")
        e(f"v_add_u32 {vr(vWb0)}, {sr(sT2)}, {vr(x)}")
        e(f"v_add_u32 {vr(vWb2)}, {2 * SEG}, {vr(vWb0)}")
        e(f"v_lshl_add_u32 {vr(x)}, {vr(g)}, 3, {vr(r4)}")
        e(f"v_lshlrev_b32 {vr(y)}, 6, {vr(x)}")
        e(f"v_lshl_add_u32 {vr(y)}, {vr(c4)}, 3, {vr(y)}")
        e(f"s_lshl_b32 {sr(sT1)}, {sr(sT3)}, 5")
        e(f"s_add_u32 {sr(sT2)}, {sr(sT2)}, {sr(sT1)}")
        e(f"v_add_u32 {vr(vSideQ)}, {sr(sT2)}, {vr(y)}")
        e(f"s_lshr_b32 {sr(sT1)}, {sr(sW)}, 1")
        e(f"s_add_u32 {sr(sT1)}, {sr(sT1)}, 1")
        e(f"s_mul_i32 {sr(sT0)}, {sr(sT1)}, {SEG}")
        e(f"v_add_u32 {vr(vSide)}, {sr(sT0)}, {vr(vSideQ)}")
        e(f"s_lshl_b32 {sr(sT1)}, {sr(sT1)}, 7")
        e(f"s_lshl_b32 {sr(sT0)}, {sr(sT3)}, 6")
        e(f"s_add_u32 {sr(sT1)}, {sr(sT1)}, {sr(sT0)}")
        e(f"s_add_u32 {sr(sT1)}, {sr(sT1)}, {CA}")
        e(f"v_lshlrev_b32 {vr(z)}, 4, {vr(g)}")
        e(f"v_add_u32 {vr(vCh)}, {sr(sT1)}, {vr(z)}")
        e(f"v_lshlrev_b32 {vr(x)}, 7, {vr(x)}")
        e(f"v_lshl_add_u32 {vr(x)}, {vr(c4)}, 3, {vr(x)}")
        e(f"v_lshrrev_b32 {vr(y)}, 1, {vr(r4)}")
        e(f"v_and_b32 {vr(z)}, 1, {vr(g)}")
        e(f"v_lshl_add_u32 {vr(y)}, {vr(z)}, 1, {vr(y)}")
        e(f"v_lshl_add_u32 {vr(vWo)}, {vr(y)}, 5, {vr(x)}")
        for ct in (1, 2, 3):
            e(f"v_xor_b32 {vr(vWo + ct)}, {ct << 5}, {vr(vWo)}")
        e(f"v_lshlrev_b32 {vr(z)}, 1, {vr(z)}")
        e(f"v_xor_b32 {vr(z)}, {vr(z)}, {vr(vL)}")
        e(f"v_and_b32 {vr(z)}, 7, {vr(z)}")
        e(f"v_lshrrev_b32 {vr(y)}, 3, {vr(vL)}")
        e(f"v_mul_u32_u24 {vr(y)}, 896, {vr(y)}")
        e(f"v_lshl_add_u32 {vr(y)}, {vr(z)}, 4, {vr(y)}")
        e(f"s_lshl_b32 {sr(sT0)}, {sr(sCG)}, 7")
        e(f"v_add_u32 {vr(vWoD)}, {sr(sT0)}, {vr(y)}")
        e(f"v_xor_b32 {vr(vWoD + 1)}, 64, {vr(vWoD)}")
        e(f"s_mul_i32 {sr(sT0)}, {sr(sH)}, 7")
        e(f"v_add_u32 {vr(x)}, {sr(sT0)}, {vr(hh)}")
        e(f"v_bfe_u32 {vr(y)}, {vr(vL)}, 4, 1")
        e(f"v_mul_u32_u24 {vr(y)}, 14336, {vr(y)}")
        e(f"v_lshl_add_u32 {vr(y)}, {vr(t15)}, 4, {vr(y)}")
        e(f"s_mul_i32 {sr(sT0)}, {sr(sW)}, {TILE}")
        e(f"v_add_u32 {vr(y)}, {sr(sT0)}, {vr(y)}")
        for i in range(4):
            e(f"v_add_u32 {vr(z)}, {2 * i}, {vr(x)}")
            e(f"v_lshrrev_b32 {vr(tm)}, 1, {vr(z)}")
            e(f"v_lshl_add_u32 {vr(vOst + i)}, {vr(tm)}, 8, {vr(y)}")
            e(f"v_and_b32 {vr(z)}, 1, {vr(z)}")
            e(f"v_lshl_add_u32 {vr(vOst + i)}, {vr(z)}, 3, {vr(vOst + i)}")
        e(f"v_mov_b32 {vr(tm)}, {OOB}")
        e(f"v_cndmask_b32_e64 {vr(vOst + 3)}, {vr(vOst + 3)}, {vr(tm)}, {sr(sHalf, 2)}")
        e(f"v_and_b32 {vr(z)}, 1, {vr(g)}")
        e(f"v_lshlrev_b32 {vr(x)}, 10, {vr(z)}")
        e(f"v_lshl_add_u32 {vr(x)}, {vr(hh)}, 9, {vr(x)}")
        e(f"v_lshl_add_u32 {vr(x)}, {vr(t15)}, 4, {vr(x)}")
        e(f"s_mul_i32 {sr(sT0)}, {sr(sTo)}, {TILE}")
        e(f"s_lshl_b32 {sr(sT1)}, {sr(sCG)}, 12")
        e(f"s_add_u32 {sr(sT0)}, {sr(sT0)}, {sr(sT1)}")
        e(f"s_lshl_b32 {sr(sT1)}, {sr(sT3)}, 8")
        e(f"s_add_u32 {sr(sT0)}, {sr(sT0)}, {sr(sT1)}")
        e(f"v_add_u32 {vr(vXst)}, {sr(sT0)}, {vr(x)}")
        e(f"v_mul_u32_u24 {vr(x)}, 1792, {vr(t15)}")
        e(f"v_lshl_add_u32 {vr(x)}, {vr(z)}, 5, {vr(x)}")
        e(f"v_lshl_add_u32 {vr(x)}, {vr(hh)}, 4, {vr(x)}")
        e(f"v_add_u32 {vr(vOut)}, {sr(sOff)}, {vr(x)}")
        e(f"v_lshlrev_b32 {vr(x)}, 3, {vr(t15)}")
        e(f"v_lshl_add_u32 {vr(x)}, {vr(hh)}, 2, {vr(x)}")
        e(f"s_lshl_b32 {sr(sT0)}, {sr(sTo)}, 11")
        e(f"s_lshl_b32 {sr(sT1)}, {sr(sCG)}, 8")
        e(f"s_add_u32 {sr(sT0)}, {sr(sT0)}, {sr(sT1)}")
        e(f"s_lshl_b32 {sr(sT1)}, {sr(sT3)}, 7")
        e(f"s_add_u32 {sr(sT0)}, {sr(sT0)}, {sr(sT1)}")
        e(f"v_add_u32 {vr(vStatSt)}, {sr(sT0)}, {vr(x)}")
        e(f"s_mov_b32 {sr(sM)}, 0xffff0000")
        e(f"s_mov_b32 {sr(sM + 1)}, 0xffff0000")
        e(f"v_cndmask_b32_e64 {vr(vStatSt)}, {vr(vStatSt)}, {vr(tm)}, {sr(sM, 2)}")
        e(f"s_and_b32 {sr(sT0)}, {sr(sH)}, 1")
        e(f"s_cmp_eq_u32 {sr(sW)}, 3")
        e(f"s_cselect_b32 {sr(sT0)}, {sr(sT0)}, 0")
        e(f"s_cmp_lt_u32 {sr(sH)}, 14")
        e(f"s_cselect_b32 {sr(sT0)}, {sr(sT0)}, 0")
        e(f"s_cmp_eq_u32 {sr(sT0)}, 1")
        e(f"s_cselect_b32 {sr(sT0)}, 0, {OOB}")
        e(f"s_lshl_b32 {sr(sT1)}, {sr(sRB)}, 13")
        e(f"s_add_u32 {sr(sT0)}, {sr(sT0)}, {sr(sT1)}")
        e(f"s_add_u32 {sr(sT0)}, {sr(sT0)}, {WS_HALO}")
        e(f"s_lshl_b32 {sr(sT1)}, {sr(sCG)}, 10")
        e(f"s_add_u32 {sr(sT1)}, {sr(sT1)}, {sr(sT0)}")
        e(f"s_lshl_b32 {sr(sT2)}, {sr(sCG)}, 6")
        e(f"s_add_u32 {sr(sT2)}, {sr(sT2)}, {sr(sT0)}")
        e(f"s_add_u32 {sr(sT2)}, {sr(sT2)}, 7168")
        for i in range(4):
            e(f"v_mov_b32 {vr(vAq + i)}, -1")
        e(f"v_add_u32 {vr(y)}, {sr(sT1)}, {vr(vL16)}")
        e(f"buffer_store_dwordx4 {vr(vAq, 4)}, {vr(y)}, {sr(rWS, 4)}, 0 offen sc1")
        e(f"v_lshlrev_b32 {vr(y)}, 2, {vr(t15)}")
        e(f"v_add_u32 {vr(y)}, {sr(sT2)}, {vr(y)}")
        e(f"buffer_store_dword {vr(vAq)}, {vr(y)}, {sr(rWS, 4)}, 0 offen sc1")
        e(f"s_mov_b32 {sr(sM)}, 0x00ff00ff")
        e(f"s_mov_b32 {sr(sM + 1)}, 0x00ff00ff")
        e(f"v_and_b32 {vr(x)}, 7, {vr(vL)}")
        e(f"v_lshl_add_u32 {vr(y)}, {vr(z)}, 1, {vr(hh)}")
        e(f"v_lshlrev_b32 {vr(y)}, 7, {vr(y)}")
        e(f"v_lshl_add_u32 {vr(y)}, {vr(x)}, 4, {vr(y)}")
        e(f"v_add_u32 {vr(vHaloX)}, {sr(sT1)}, {vr(y)}")
        e(f"v_cndmask_b32_e64 {vr(vHaloX)}, {vr(vHaloX)}, {vr(tm)}, {sr(sM, 2)}")
        e(f"v_lshlrev_b32 {vr(y)}, 3, {vr(x)}")
        e(f"v_lshl_add_u32 {vr(vHaloStSt)}, {vr(hh)}, 2, {vr(y)}")
        e(f"v_add_u32 {vr(vHaloStSt)}, {sr(sT2)}, {vr(vHaloStSt)}")
        e(f"s_mov_b32 {sr(sAcc)}, 0xffff00ff")
        e(f"s_mov_b32 {sr(sAcc + 1)}, 0xffff00ff")
        e(f"v_cndmask_b32_e64 {vr(vHaloStSt)}, {vr(vHaloStSt)}, {vr(tm)}, {sr(sAcc, 2)}")
        e(f"s_lshl_b32 {sr(sT0)}, {sr(sRB)}, 13")
        e(f"s_add_u32 {sr(sT0)}, {sr(sT0)}, {WS_HALO - 2 * 8192}")
        e(f"s_cmp_eq_u32 {sr(sX)}, 0")
        e(f"s_cselect_b32 {sr(sT0)}, {OOB}, {sr(sT0)}")
        e(f"v_lshlrev_b32 {vr(vHaloLd)}, 7, {vr(g)}")
        e(f"v_lshl_add_u32 {vr(vHaloLd)}, {vr(x)}, 4, {vr(vHaloLd)}")
        e(f"v_add_u32 {vr(vHaloLd)}, {sr(sT0)}, {vr(vHaloLd)}")
        e(f"v_cndmask_b32_e64 {vr(vHaloLd)}, {vr(vHaloLd)}, {vr(tm)}, {sr(sM, 2)}")
        e(f"v_lshl_add_u32 {vr(vHaloStLd)}, {vr(g)}, 6, {vr(y)}")
        e(f"s_add_u32 {sr(sT0)}, {sr(sT0)}, 7168")
        e(f"v_add_u32 {vr(vHaloStLd)}, {sr(sT0)}, {vr(vHaloStLd)}")
        e(f"v_cndmask_b32_e64 {vr(vHaloStLd)}, {vr(vHaloStLd)}, {vr(tm)}, {sr(sM, 2)}")
        e(f"v_lshlrev_b32 {vr(y)}, 7, {vr(z)}")
        e(f"v_lshl_add_u32 {vr(y)}, {vr(x)}, 4, {vr(y)}")
        e(f"v_lshl_add_u32 {vr(y)}, {vr(hh)}, 3, {vr(y)}")
        e(f"s_lshl_b32 {sr(sT0)}, {sr(sT3)}, 8")
        e(f"s_add_u32 {sr(sT0)}, {sr(sT0)}, {KVS}")
        e(f"v_add_u32 {vr(vHaloW)}, {sr(sT0)}, {vr(y)}")
        e(f"v_bfe_u32 {vr(y)}, {vr(vL)}, 2, 1")
        e(f"v_lshlrev_b32 {vr(y)}, 8, {vr(y)}")
        e(f"v_lshl_add_u32 {vr(y)}, {vr(g)}, 5, {vr(y)}")
        e(f"v_lshl_add_u32 {vr(y)}, {vr(c4)}, 1, {vr(y)}")
        e(f"s_lshl_b32 {sr(sT0)}, {sr(sT3)}, 7")
        e(f"s_add_u32 {sr(sT0)}, {sr(sT0)}, {KVS + 512}")
        e(f"v_add_u32 {vr(y)}, {sr(sT0)}, {vr(y)}")
        e(f"s_cmp_ge_u32 {sr(sW)}, 2")
        e(f"s_cselect_b64 vcc, -1, 0")
        e(f"v_cndmask_b32 {vr(vHaloW)}, {vr(vHaloW)}, {vr(y)}, vcc")
        e(f"v_lshlrev_b32 {vr(y)}, 3, {vr(t31)}")
        e(f"v_lshl_add_u32 {vr(y)}, {vr(hh)}, 8, {vr(y)}")
        e(f"s_lshl_b32 {sr(sT0)}, {sr(sW)}, 11")
        e(f"v_add_u32 {vr(vStatLd)}, {sr(sT0)}, {vr(y)}")
        e(f"v_cndmask_b32_e64 {vr(vStatLd3)}, {vr(vStatLd)}, {vr(tm)}, {sr(sHalf, 2)}")
        e(f"v_lshlrev_b32 {vr(vFlagO)}, 2, {vr(t15)}")
        e(f"v_min_u32 {vr(vFlagX)}, 52, {vr(vFlagO)}")
        e(f"s_lshl_b32 {sr(sT0)}, {sr(sW)}, 10")
        e(f"s_add_u32 {sr(sT1)}, {sr(sT0)}, {KVS}")
        e(f"v_lshlrev_b32 {vr(y)}, 7, {vr(hh)}")
        e(f"v_lshl_add_u32 {vr(y)}, {vr(x)}, 4, {vr(y)}")
        e(f"v_add_u32 {vr(vKsl)}, {sr(sT1)}, {vr(y)}")
        e(f"s_add_u32 {sr(sT1)}, {sr(sT1)}, 512")
        e(f"v_lshlrev_b32 {vr(y)}, 3, {vr(vL)}")
        e(f"v_add_u32 {vr(vVsl)}, {sr(sT1)}, {vr(y)}")
        e(f"s_add_u32 {sr(sT1)}, {sr(sT0)}, {KVR}")
        e(f"v_add_u32 {vr(vKvW)}, {sr(sT1)}, {vr(vL16)}")
        e(f"v_add_u32 {vr(vKvR)}, {KVR}, {vr(vL16)}")
        e(f"s_lshl_b32 {sr(sT1)}, {sr(sW)}, 8")
        e(f"s_add_u32 {sr(sT1)}, {sr(sT1)}, {ST}")
        e(f"v_lshlrev_b32 {vr(y)}, 2, {vr(vL)}")
        e(f"v_add_u32 {vr(vStW)}, {sr(sT1)}, {vr(y)}")
        e(f"v_lshlrev_b32 {vr(y)}, 4, {vr(hh)}")
        e(f"v_add_u32 {vr(vStR)}, {sr(sT1)}, {vr(y)}")
        e(f"v_add_u32 {vr(vCq)}, {CA}, {vr(y)}")
        e(f"v_lshlrev_b32 {vr(vCv)}, 2, {vr(t31)}")
        e(f"v_add_u32 {vr(vCv)}, {CA + 256}, {vr(vCv)}")
        e(f"v_mul_u32_u24 {vr(vPkW)}, {PKROW}, {vr(t31)}")
        e(f"v_add_u32 {vr(vPkW)}, {vr(vPkW)}, {vr(y)}")
        e(f"s_mul_i32 {sr(sT1)}, {sr(sW)}, {32 * PKROW}")
        e(f"v_add_u32 {vr(vPkW)}, {sr(sT1)}, {vr(vPkW)}")
        e(f"s_lshl_b32 {sr(sT1)}, {sr(sW)}, 11")
        e(f"s_add_u32 {sr(sT1)}, {sr(sT1)}, {VIMG}")
        e(f"v_add_u32 {vr(vVfW)}, {sr(sT1)}, {vr(vL16)}")
        e(f"v_lshlrev_b32 {vr(y)}, 4, {vr(hh)}")
        e(f"v_lshl_add_u32 {vr(y)}, {vr(z)}, 2, {vr(y)}")
        e(f"v_add_u32 {vr(y)}, {vr(y)}, {vr(r4)}")
        e(f"v_mul_u32_u24 {vr(y)}, {PKROW}, {vr(y)}")
        e(f"v_lshl_add_u32 {vr(y)}, {vr(c4)}, 3, {vr(y)}")
        e(f"s_lshl_b32 {sr(sT1)}, {sr(sW)}, 5")
        e(f"v_add_u32 {vr(vPkR)}, {sr(sT1)}, {vr(y)}")
        e(f"v_lshlrev_b32 {vr(y)}, 10, {vr(hh)}")
        e(f"v_lshl_add_u32 {vr(y)}, {vr(z)}, 9, {vr(y)}")
        e(f"v_lshl_add_u32 {vr(y)}, {vr(t15)}, 4, {vr(y)}")
        e(f"v_add_u32 {vr(vVfR)}, {VIMG}, {vr(y)}")
        for i in range(4):
            e(f"v_mov_b32 {vr(vOnes + i)}, 0x3f803f80")
        e(f"v_cmp_eq_u32 vcc, 28, {vr(t31)}")
        e(f"v_cndmask_b32_e64 {vr(vPadC)}, 0, {vr(vOnes)}, vcc")
        e(f"v_lshlrev_b32 {vr(y)}, 2, {vr(hh)}")
        e(f"v_sub_u32 {vr(tm)}, {vr(t31)}, {vr(y)}")
        e(f"v_mov_b32 {vr(x)}, 0x3f80")
        e(f"v_mov_b32 {vr(y)}, 0x3f800000")
        for dd, k in enumerate((0, 2, 8, 10)):
            e(f"v_cmp_eq_u32 vcc, {k}, {vr(tm)}")
            e(f"v_cndmask_b32_e64 {vr(vSel + dd)}, 0, {vr(x)}, vcc")
            e(f"v_cmp_eq_u32 vcc, {k + 1}, {vr(tm)}")
            e(f"v_cndmask_b32 {vr(vSel + dd)}, {vr(vSel + dd)}, {vr(y)}, vcc")
        e(f"v_mov_b32 {vr(x)}, {f32(NEG)}")
        for r in range(16):
            e(f"v_subrev_u32 {vr(y)}, {8 * (r >> 2) + (r & 3)}, {vr(tm)}")
            e(f"v_cmp_gt_u32 vcc, 8, {vr(y)}")
            e(f"v_cndmask_b32_e64 {vr(vBias + r)}, {vr(x)}, 0, vcc")
        e(f"s_or_b32 {sr(sT0)}, {sr(sX)}, {sr(sW)}")
        e(f"s_cmp_eq_u32 {sr(sT0)}, 0")
        e(f"s_cselect_b32 {sr(sT0)}, 1000, 0")
        e(f"v_add_u32 {vr(y)}, {sr(sT0)}, {vr(tm)}")
        for j in range(4):
            e(f"v_cmp_gt_i32 vcc, {j}, {vr(y)}")
            e(f"v_cndmask_b32_e64 {vr(vBias + 16 + j)}, {vr(x)}, 0, vcc")
        e(f"v_mov_b32 {vr(x)}, 0")
        e(f"v_mov_b32 {vr(x + 1)}, 0")
        e(f"v_lshlrev_b32 {vr(z)}, 2, {vr(vL)}")
        e(f"v_add_u32 {vr(z)}, {CA}, {vr(z)}")
        for k in range(3):
            e(f"ds_write_b32 {vr(z)}, {vr(x)} offset:{256 * k}")
        e(f"v_lshlrev_b32 {vr(z)}, 3, {vr(vL)}")
        e(f"v_add_u32 {vr(z)}, {KVS + 512}, {vr(z)}")
        e(f"v_mov_b32 {vr(vT + 16)}, {vr(vPadC)}")
        e(f"v_mov_b32 {vr(vT + 17)}, {vr(vPadC)}")
        e(f"ds_write_b64 {vr(z)}, {vr(vT + 16, 2)}")
        a.wait(self.tokE)
        e(f"v_add_u32 {vr(vTag)}, 1, {vr(vTag)}")
        e(f"s_getreg_b32 {sr(sXcc)}, hwreg(HW_REG_XCC_ID, 0, 4)")
        e(f"v_readfirstlane_b32 {sr(sTag)}, {vr(vTag)}")
        e(f"v_mov_b32 {vr(vT + 16)}, {vr(vTag)}")
        e(f"v_mov_b32 {vr(vT + 17)}, {sr(sXcc)}")
        e(f"s_lshl_b32 {sr(sT0)}, {sr(sRB)}, 7")
        e(f"s_lshl_b32 {sr(sT1)}, {sr(sH)}, 3")
        e(f"s_add_u32 {sr(sT0)}, {sr(sT0)}, {sr(sT1)}")
        e(f"s_add_u32 {sr(sT0)}, {sr(sT0)}, {WS_TAB}")
        e(f"s_cmp_eq_u32 {sr(sW)}, 0")
        e(f"s_cselect_b32 {sr(sT0)}, {sr(sT0)}, {OOB}")
        e("s_mov_b64 exec, 1")
        e(f"buffer_store_dwordx2 {vr(vT + 16, 2)}, off, {sr(rWS, 4)}, {sr(sT0)} sc1")
        e("s_mov_b64 exec, -1")
        e(f"s_sub_u32 {sr(sT0)}, {sr(sTag)}, 1")
        e(f"s_bfe_u32 {sr(sT0)}, {sr(sT0)}, 0x10010")
        e(f"s_xor_b32 {sr(sT0)}, {sr(sT0)}, 1")
        e(f"s_and_b32 {sr(sTag16)}, {sr(sTag)}, 0x1fff")
        e(f"s_lshl_b32 {sr(sTag16)}, {sr(sTag16)}, 1")
        e(f"s_or_b32 {sr(sTag16)}, {sr(sTag16)}, {sr(sT0)}")

    def stats_finish(self, s, q, a_, b_):
        return [f"v_mul_f32 {vr(s)}, {f32(1 / 448)}, {vr(s)}",
                f"v_mul_f32 {vr(q)}, {f32(1 / 448)}, {vr(q)}",
                f"v_fma_f32 {vr(q)}, -{vr(s)}, {vr(s)}, {vr(q)}",
                f"v_max_f32 {vr(q)}, 0, {vr(q)}",
                f"v_add_f32 {vr(q)}, {f32(1e-5)}, {vr(q)}",
                f"v_rsq_f32 {vr(a_)}, {vr(q)}",
                f"v_mul_f32 {vr(b_)}, {vr(a_)}, {vr(s)}"]

    tA, tB, tAq, tBq, tAp, tCv, tHa, tHb = vT + 2, vT + 3, vT + 4, vT + 5, vT + 6, vT + 7, vT + 8, vT + 9
    hAcc = vT + 12
    hC = vT + 16
    cQ = vT + 20

    def stats_publish(self):
        t = vT
        return [f"v_cndmask_b32_e64 {vr(t)}, {vr(self.tA)}, {vr(self.tB)}, {sr(sHalf, 2)}",
                f"ds_write_b32 {vr(vStW)}, {vr(t)}"]

    def stats_readback(self):
        r = []
        for i in range(4):
            r.append(f"ds_read_b128 {vr(vAt + 4 * i, 4)}, {vr(vStR)} offset:{32 * i}")
        for i in range(4):
            r.append(f"ds_read_b128 {vr(vBv + 4 * i, 4)}, {vr(vStR)} offset:{128 + 32 * i}")
        return r

    def c_reads(self, coff, q=True, kv=True):
        r = []
        if kv:
            for i in range(4):
                r.append(f"ds_read_b128 {vr(vBk + 4 * i, 4)}, {vr(vCq)} offset:{coff + 128 + 32 * i}")
            r.append(f"ds_read_b32 {vr(self.tCv)}, {vr(vCv)} offset:{coff}")
        if q:
            for i in range(4):
                r.append(f"ds_read_b128 {vr(vBq + 4 * i, 4)}, {vr(vCq)} offset:{coff + 32 * i}")
        return r

    def scale16(self, base, s, packed):
        if packed:
            return [self.pk("mul", base + 2 * i, base + 2 * i, s, bc=(1,)) for i in range(8)]
        return [f"v_mul_f32 {vr(base + i)}, {vr(s)}, {vr(base + i)}" for i in range(16)]

    def q_scalars(self):
        return [f"v_mul_f32 {vr(self.tAq)}, {f32(QSCALE)}, {vr(self.tA)}",
                f"v_mul_f32 {vr(self.tBq)}, {f32(QSCALE)}, {vr(self.tB)}",
                f"v_cndmask_b32_e64 {vr(self.tAp)}, {vr(self.tAq)}, 0, {sr(sHalf, 2)}"]

    def row_reduce(self, s, q):
        return [f"v_permlane32_swap_b32 {vr(s)}, {vr(q)}",
                f"v_add_f32 {vr(s)}, {vr(s)}, {vr(q)}",
                f"v_mov_b32 {vr(q)}, {vr(s)}",
                f"v_permlane16_swap_b32 {vr(s)}, {vr(q)}",
                f"v_add_f32 {vr(s)}, {vr(s)}, {vr(q)}"]

    def halo_stats(self, s, q):
        r = self.row_reduce(s, q)
        r += [f"v_mov_b32 {vr(q)}, {vr(s)}", f"v_permlane32_swap_b32 {vr(s)}, {vr(q)}"]
        r += self.stats_finish(s, q, self.tHa, self.tHb)
        return r

    def gemm_l1(self):
        e, a = self.e, self.a
        xr = vBq
        hf = vBk
        sw = vBk + 8
        xb = vAt
        S, Q, hS, hQ = vAt + 4, vAt + 5, vAt + 6, vAt + 7
        t0, t1 = vAt + 8, vAt + 9
        e(f"v_and_b32 {vr(t0)}, 31, {vr(vL)}")
        e(f"v_lshrrev_b32 {vr(t1)}, 5, {vr(vL)}")
        e(f"v_bfe_u32 {vr(xb)}, {vr(vL)}, 2, 2")
        e(f"v_xor_b32 {vr(xb)}, {vr(xb)}, {vr(t1)}")
        e(f"v_lshlrev_b32 {vr(xb)}, 4, {vr(xb)}")
        e(f"v_lshl_add_u32 {vr(xb)}, {vr(t0)}, 6, {vr(xb)}")
        e(f"v_add_u32 {vr(xb)}, {sr(sRing)}, {vr(xb)}")
        e(f"v_xor_b32 {vr(xb + 1)}, 32, {vr(xb)}")
        e(f"v_and_b32 {vr(t0)}, 7, {vr(vL)}")
        e(f"v_lshrrev_b32 {vr(t1)}, 4, {vr(vL)}")
        e(f"v_lshlrev_b32 {vr(t1)}, 4, {vr(t1)}")
        e(f"v_lshl_add_u32 {vr(xb + 2)}, {vr(t0)}, 6, {vr(t1)}")
        e(f"v_add_u32 {vr(xb + 2)}, {HST}, {vr(xb + 2)}")
        for r in (S, Q, hS, hQ):
            e(f"v_mov_b32 {vr(r)}, 0")
        for c in range(7):
            a.wait(self.chunk_tok[c])
            a.barrier()
            if c == 0:
                self.stamp("l1_first")
                e(f"v_and_b32 {vr(t0)}, 15, {vr(vL)}")
                e(f"v_lshrrev_b32 {vr(t1)}, 4, {vr(vL)}")
                e(f"v_lshlrev_b32 {vr(t1)}, 3, {vr(t1)}")
                e(f"v_lshl_add_u32 {vr(t0)}, {vr(t0)}, 7, {vr(t1)}")
                e(f"v_add_u32 {vr(t0)}, {sr(sRing)}, {vr(t0)}")
                for ct in range(4):
                    e(f"ds_read_b64 {vr(vBv + 2 * ct, 2)}, {vr(t0)} offset:{12288 + 32 * ct}")
            last = None
            for k in range(4):
                b = 2 * c + (k >> 1)
                last = e(f"ds_read_b128 {vr(xr + 4 * k, 4)}, {vr(xb + (k & 1))} offset:{(b % 6) * 2048}")
            self.emit(self.w_tr(vWf, 0, 4 * c) + self.w_tr(vWf + 4, 1, 4 * c) + self.w_tr(vWf + 8, 2, 4 * c))
            if c + 3 < 7:
                a.wait(last)
                self.l1_chunk(c + 3)
            if c == 0:
                for i in range(8):
                    e(f"v_lshlrev_b32 {vr(vRes + 2 * i)}, 16, {vr(vBv + i)}")
                    e(f"v_and_b32 {vr(vRes + 2 * i + 1)}, 0xffff0000, {vr(vBv + i)}")
            for k in range(4):
                s = 4 * c + k
                wb, wn = vWf + 12 * (k & 1), vWf + 12 * ((k + 1) & 1)
                x = vr(xr + 4 * k, 4)
                first = s == 0
                nxt = [self.w_tr(wn + 4 * t, t, s + 1) if k < 3 else [] for t in range(3)]
                if k % 2 == 0:
                    s32 = s >> 1
                    nxt[0] = nxt[0] + [f"ds_read_b128 {vr(hf + 4 * (s32 & 1), 4)}, {vr(xb + 2)} offset:{s32 * 512}"]
                    nxt[1] = nxt[1] + self.side_tr(sw, vSide, s32)
                    nxt[2] = nxt[2] + self.side_tr(sw + 4, vSideQ, s32)
                e(self.mfma32(vAq, vr(wb, 4), x, "0" if first else vr(vAq, 16)))
                self.emit(nxt[0])
                e(self.mfma32(vAk, vr(wb + 4, 4), x, "0" if first else vr(vAk, 16)))
                self.emit(nxt[1])
                e(self.mfma32(vAv, x, vr(wb + 8, 4), "0" if first else vr(vAv, 16)))
                self.emit(nxt[2])
                if k % 2 == 1:
                    s32 = s >> 1
                    h4 = hf + 4 * (s32 & 1)
                    z = s32 == 0
                    e(self.mfma16(self.hAcc, vr(sw, 4), vr(h4, 4), "0" if z else vr(self.hAcc, 4)))
                    e(self.mfma16(self.hC, vr(sw, 4), vr(vOnes, 4), "0" if z else vr(self.hC, 4)))
                    e(self.mfma16(self.cQ, vr(sw + 4, 4), vr(vOnes, 4), "0" if z else vr(self.cQ, 4)))
                    for kk in (k - 1, k):
                        for d in range(4):
                            e(f"v_dot2c_f32_bf16 {vr(Q)}, {vr(xr + 4 * kk + d)}, {vr(xr + 4 * kk + d)}")
                            e(f"v_dot2c_f32_bf16 {vr(S)}, {vr(xr + 4 * kk + d)}, {vr(vOnes)}")
                    for d in range(4):
                        e(f"v_dot2c_f32_bf16 {vr(hQ)}, {vr(h4 + d)}, {vr(h4 + d)}")
                        e(f"v_dot2c_f32_bf16 {vr(hS)}, {vr(h4 + d)}, {vr(vOnes)}")
        self.stamp("l1_gemm")
        e(f"s_lshl_b32 {sr(sT1)}, {sr(sRB)}, 7")
        e(f"s_add_u32 {sr(sT1)}, {sr(sT1)}, {WS_TAB}")
        e(f"v_lshlrev_b32 {vr(t0)}, 1, {vr(vFlagO)}")
        self.tab = (vT + 10, self.cQ)
        e(f"buffer_load_dwordx2 {vr(vT + 10, 2)}, {vr(t0)}, {sr(rWS, 4)}, {sr(sT1)} offen sc1")
        for j in range(14):
            self.wo_dma(rWoA, j)
        e(f"s_lshr_b32 {sr(sT1)}, {sr(sW)}, 1")
        e(f"s_add_u32 {sr(sT1)}, {sr(sT1)}, 1")
        e(f"s_lshl_b32 {sr(sT1)}, {sr(sT1)}, 7")
        e(f"v_subrev_u32 {vr(t1)}, {sr(sT1)}, {vr(vCh)}")
        e(f"s_mov_b64 exec, {sr(sMaskC, 2)}")
        e(f"ds_write_b128 {vr(vCh)}, {vr(self.hC, 4)}")
        e(f"ds_write_b128 {vr(t1)}, {vr(self.cQ, 4)}")
        e("s_mov_b64 exec, -1")
        self.emit(self.both_halves("v_add_f32", S, vT))
        self.emit(self.both_halves("v_add_f32", Q, vT + 1))
        self.emit(self.stats_finish(S, Q, self.tA, self.tB))
        self.emit(self.halo_stats(hS, hQ))
        self.emit(self.stats_publish())
        a.barrier()
        self.emit(self.c_reads(0, q=False))
        self.emit(self.stats_readback())
        self.emit(self.c_reads(0, kv=False))
        self.emit(self.q_scalars())
        self.emit(self.scale16(vBk, self.tB, True))
        self.emit(self.scale16(vBv, self.tCv, True))
        self.emit(self.scale16(vBq, self.tBq, True))

    def check_table(self):
        e, a = self.e, self.a
        tab, vaddr = self.tab
        lr, lo = a.newlabel("Ltabretry"), a.newlabel("Ltabok")
        e(f"v_cmp_ne_u32 vcc, {sr(sTag)}, {vr(tab)}")
        e(f"s_cbranch_vccnz {lr}")
        a.label(lo)
        e(f"v_cmp_ne_u32 vcc, {sr(sXcc)}, {vr(tab + 1)}")
        e("s_cmp_lg_u64 vcc, 0")
        e(f"s_cselect_b32 {sr(sSlow)}, 1, {1 if self.o.force_slow else 0}")
        a.tail += [lr + ":",
                   f"    v_lshlrev_b32 {vr(vaddr)}, 1, {vr(vFlagO)}",
                   f"    s_lshl_b32 {sr(sT1)}, {sr(sRB)}, 7",
                   f"    s_add_u32 {sr(sT1)}, {sr(sT1)}, {WS_TAB}",
                   f"    buffer_load_dwordx2 {vr(tab, 2)}, {vr(vaddr)}, {sr(rWS, 4)}, {sr(sT1)} offen sc1",
                   "    s_waitcnt vmcnt(0)",
                   f"    v_cmp_ne_u32 vcc, {sr(sTag)}, {vr(tab)}",
                   f"    s_cbranch_vccz {lo}",
                   f"    s_sub_u32 {sr(sBud)}, {sr(sBud)}, 1",
                   f"    s_cbranch_scc0 {lr}",
                   f"    s_mov_b32 {sr(sBud)}, 0",
                   f"    s_branch {lo}"]

    def correct(self, acc, a_, bc, a_last=None, per_reg=False):
        r = []
        for i in range(8):
            if per_reg:
                r.append(self.pk("fma", acc + 2 * i, acc + 2 * i, a_ + 2 * i, bc + 2 * i, neg=(2,)))
            else:
                s = a_last if (a_last is not None and i >= 6) else a_
                r.append(self.pk("fma", acc + 2 * i, acc + 2 * i, s, bc + 2 * i, bc=(1,), neg=(2,)))
        return r

    @staticmethod
    def cvt(dst, src, n):
        return [f"v_cvt_pk_bf16_f32 {vr(dst + i)}, {vr(src + 2 * i)}, {vr(src + 2 * i + 1)}" for i in range(n)]

    def v_frags(self, Vf):
        r = self.correct(vAv, vAt, vBv, per_reg=True) + self.cvt(Vf, vAv, 8)
        r += [f"v_cndmask_b32_e64 {vr(Vf + i)}, {vr(Vf + i)}, {vr(vPadC)}, {sr(sPad, 2)}" for i in range(8)]
        return r

    def publish_o(self, layer, acc, eps):
        e, a = self.e, self.a
        t0, t1 = vT, vT + 1
        e(f"v_mov_b32 {vr(t0)}, {vr(acc + 12)}")
        e(f"v_mov_b32 {vr(t1)}, {vr(acc + 12)}")
        e(f"s_mul_i32 {sr(sOff)}, {sr(sRB)}, {GRP}")
        e(f"s_add_u32 {sr(sOff)}, {sr(sOff)}, {WS_O + self.buf(0x200000, layer)}")
        e(f"v_permlane32_swap_b32 {vr(t0)}, {vr(t1)}")
        if eps:
            e(f"v_add_f32 {vr(t1)}, {f32(eps)}, {vr(t1)}")
        e(f"v_rcp_f32 {vr(t1)}, {vr(t1)}")
        self.emit(self.scale16(acc, t1, True))
        self.emit(self.cvt(vWf, acc, 8))
        toks = self.mode_ops([f"buffer_store_dwordx2 {vr(vWf + 2 * i, 2)}, {vr(vOst + i)}, {sr(rWS, 4)}, {sr(sOff)} offen"
                              for i in range(4)])
        e(f"s_lshl_b32 {sr(sT1)}, {sr(sRB)}, 2")
        e(f"s_add_u32 {sr(sT1)}, {sr(sT1)}, {sr(sW)}")
        e(f"s_lshl_b32 {sr(sT1)}, {sr(sT1)}, 7")
        e(f"s_lshl_b32 {sr(sT2)}, {sr(sH)}, 2")
        e(f"s_add_u32 {sr(sT1)}, {sr(sT1)}, {sr(sT2)}")
        e(f"s_add_u32 {sr(sT1)}, {sr(sT1)}, {WS_FO + layer * 8192}")
        a.wait(*toks)
        self.flag_store(sT1)

    def attention(self, layer):
        e, a = self.e, self.a
        Kf, Vf, Qf = vWf, vWf + 8, vWf + 16
        self.emit(self.correct(vAk, self.tA, vBk))
        self.emit(self.cvt(Kf, vAk, 8))
        e("s_mov_b32 exec_lo, 0xff000000")
        e("s_mov_b32 exec_hi, 0xff000000")
        e(f"ds_write_b128 {vr(vKsl)}, {vr(Kf, 4)} offset:1024")
        e(f"ds_write_b128 {vr(vKsl)}, {vr(Kf + 4, 4)} offset:1280")
        e("s_mov_b64 exec, -1")
        self.emit(self.v_frags(Vf))
        e(f"ds_write_b64 {vr(vVsl)}, {vr(Vf + 6, 2)} offset:1024")
        h = self.hAcc
        for i in (0, 2):
            e(self.pk("mul", self.hC + i, self.hC + i, self.tHb, bc=(1,)))
            e(self.pk("fma", h + i, h + i, self.tHa, self.hC + i, bc=(1,), neg=(2,)))
        self.emit(self.cvt(h, h, 2))
        lv, lj = a.newlabel("Lhv"), a.newlabel("Lhj")
        e("s_mov_b32 exec_lo, 0xff00ff00")
        e("s_mov_b32 exec_hi, 0xff00ff00")
        e(f"s_cmp_ge_u32 {sr(sW)}, 2")
        e(f"s_cbranch_scc1 {lv}")
        e(f"ds_write_b64 {vr(vHaloW)}, {vr(h, 2)}")
        a.label(lj)
        a.tail += [lv + ":",
                   f"    s_cmp_eq_u32 {sr(sW)}, 3",
                   "    s_cselect_b32 exec_hi, 0x0000ff00, exec_hi",
                   f"    ds_write_b16 {vr(vHaloW)}, {vr(h)}",
                   f"    ds_write_b16_d16_hi {vr(vHaloW)}, {vr(h)} offset:8",
                   f"    ds_write_b16 {vr(vHaloW)}, {vr(h + 1)} offset:16",
                   f"    ds_write_b16_d16_hi {vr(vHaloW)}, {vr(h + 1)} offset:24",
                   f"    s_branch {lj}"]
        e("s_mov_b64 exec, -1")
        self.emit(self.correct(vAq, self.tAq, vBq, a_last=self.tAp))
        self.emit(self.cvt(Qf, vAq, 8))
        So, Sp = vAk, vAq
        e(self.mfma32(So, vr(Kf, 4), vr(Qf, 4), vr(vBias, 16)))
        e(self.mfma32(So, vr(Kf + 4, 4), vr(Qf + 4, 4), vr(So, 16)))
        a.force("s_waitcnt lgkmcnt(0)")
        a.barrier()
        Kp, Vp, P = vBq, vBq + 8, vBk
        e(f"ds_read_b128 {vr(Kp, 4)}, {vr(vKsl)}")
        e(f"ds_read_b128 {vr(Kp + 4, 4)}, {vr(vKsl)} offset:256")
        e(f"ds_read_b64 {vr(Vp + 2, 2)}, {vr(vVsl)}")
        e(f"v_mov_b32 {vr(Vp)}, 0")
        e(f"v_mov_b32 {vr(Vp + 1)}, 0")
        e(f"v_mov_b32 {vr(P + 8)}, 0")
        e(f"v_mov_b32 {vr(P + 9)}, 0")
        e(self.mfma32(Sp, vr(Kp, 4), vr(Qf, 4), vr(vBias + 4, 16)))
        e(self.mfma32(Sp, vr(Kp + 4, 4), vr(Qf + 4, 4), vr(Sp, 16)))
        m, m2 = vT, vT + 1
        e(f"v_max3_f32 {vr(m)}, {vr(So)}, {vr(So + 1)}, {vr(So + 2)}")
        e(f"v_max3_f32 {vr(m2)}, {vr(So + 3)}, {vr(So + 4)}, {vr(So + 5)}")
        for i in range(6, 14, 4):
            e(f"v_max3_f32 {vr(m)}, {vr(m)}, {vr(So + i)}, {vr(So + i + 1)}")
            e(f"v_max3_f32 {vr(m2)}, {vr(m2)}, {vr(So + i + 2)}, {vr(So + i + 3)}")
        e(f"v_max3_f32 {vr(m)}, {vr(m)}, {vr(So + 14)}, {vr(So + 15)}")
        if layer == 0:
            self.check_table()
        e(f"v_max3_f32 {vr(m2)}, {vr(m2)}, {vr(Sp + 12)}, {vr(Sp + 13)}")
        e(f"v_max3_f32 {vr(m)}, {vr(m)}, {vr(Sp + 14)}, {vr(Sp + 15)}")
        e(f"v_max_f32 {vr(m)}, {vr(m)}, {vr(m2)}")
        self.emit(self.both_halves("v_max_f32", m, m2))
        vals = [So + 2 * i for i in range(8)] + [Sp + 12, Sp + 14]
        for r in vals:
            e(self.pk("add", r, r, m, bc=(1,), neg=(1,)))
        dst = [P + i for i in range(8)] + [P + 10, P + 11]
        for r in vals:
            e(f"v_exp_f32 {vr(r)}, {vr(r)}")
            e(f"v_exp_f32 {vr(r + 1)}, {vr(r + 1)}")
        for r, d in zip(vals, dst):
            e(f"v_cvt_pk_bf16_f32 {vr(d)}, {vr(r)}, {vr(r + 1)}")
        O = vAv
        e(self.mfma32(O, vr(Vf, 4), vr(P, 4), "0"))
        e(self.mfma32(O, vr(Vf + 4, 4), vr(P + 4, 4), vr(O, 16)))
        e(self.mfma32(O, vr(Vp, 4), vr(P + 8, 4), vr(O, 16)))
        self.publish_o(layer, O, 0)
        self.stamp(f"o{layer + 1}_pub")

    def stash_addr(self):
        t = vT + 2
        self.e(f"v_add_u32 {vr(t)}, {sr(sWdst)}, {vr(vL16)}")
        self.e(f"v_add_u32 {vr(t + 1)}, {2 * SEG}, {vr(t)}")
        out = []
        for seg in range(3):
            for j in range(7):
                out.append((t + (seg == 2), (seg * SEG if seg < 2 else 0) + j * 4096))
        return out

    def stash_out(self):
        for i, (b, off) in enumerate(self.stash_addr()):
            self.e(f"ds_read_b128 {ar(aST + 4 + 4 * i, 4)}, {vr(b)} offset:{off}")

    def stash_swap(self):
        for i, (b, off) in enumerate(self.stash_addr()):
            self.e(f"ds_read_b128 {ar(aST + 4 * i, 4)}, {vr(b)} offset:{off}")
            self.e(f"ds_write_b128 {vr(b)}, {ar(aST + 4 + 4 * i, 4)} offset:{off}")

    def stash_in(self):
        for i, (b, off) in enumerate(self.stash_addr()):
            self.e(f"ds_write_b128 {vr(b)}, {ar(aST + 4 * i, 4)} offset:{off}")

    def load_phi(self):
        e = self.e
        m, f, t, u = vT + 4, vT + 5, vT + 6, vT + 7
        e(f"v_and_b32 {vr(m)}, 31, {vr(vL)}")
        e(f"v_lshrrev_b32 {vr(f)}, 4, {vr(m)}")
        e(f"v_bfe_u32 {vr(t)}, {vr(m)}, 2, 1")
        e(f"v_lshl_add_u32 {vr(f)}, {vr(f)}, 1, {vr(t)}")
        e(f"v_mul_u32_u24 {vr(f)}, 7, {vr(f)}")
        e(f"v_bfe_u32 {vr(t)}, {vr(m)}, 3, 1")
        e(f"v_and_b32 {vr(u)}, 3, {vr(m)}")
        e(f"v_lshl_add_u32 {vr(t)}, {vr(t)}, 2, {vr(u)}")
        e(f"v_add_u32 {vr(f)}, {vr(f)}, {vr(t)}")
        e(f"v_cmp_eq_u32 {sr(sM, 2)}, 7, {vr(t)}")
        e(f"v_lshrrev_b32 {vr(u)}, 5, {vr(vL)}")
        e(f"v_mul_u32_u24 {vr(u)}, 224, {vr(u)}")
        e(f"v_lshl_add_u32 {vr(f)}, {vr(f)}, 1, {vr(u)}")
        e(f"v_add_u32 {vr(f)}, {PHI}, {vr(f)}")
        for ee in range(2):
            for sg in range(8):
                off = (16 * ee + 8 * (sg >> 2) + (sg & 3)) * 56
                e(f"ds_read_u16 {vr(vBq + 8 * ee + sg)}, {vr(f)} offset:{off}")
        e(f"s_or_b64 {sr(sAcc, 2)}, {sr(sM, 2)}, {sr(sHalf, 2)}")
        for i in range(8):
            e(f"v_lshl_or_b32 {vr(vPhi + i)}, {vr(vBq + 2 * i + 1)}, 16, {vr(vBq + 2 * i)}")
            e(f"v_cndmask_b32_e64 {vr(vPhi + i)}, {vr(vPhi + i)}, 0, {sr(sAcc if i >= 6 else sM, 2)}")

    def between(self, layer):
        e, a = self.e, self.a
        if layer == 0:
            self.stash_out()
            a.waitcnt(lg=0)
            for c in range(7):
                for seg in range(3):
                    self.w_dma(rWB, seg, c)
            e(f"s_mul_i32 {sr(sT1)}, {sr(sH)}, 1568")
            self.dma(vL16, rPhi, None, PHI, sT1, 0)
            self.dma(vL16, rPhi, None, PHI + 1024, sT1, 1024)
            a.waitcnt(vm=0)
        elif layer == 1:
            self.stash_swap()
        elif layer == 2:
            self.stash_in()
        a.barrier()
        if layer == 0:
            self.load_phi()

    def outproj(self, layer):
        e, a = self.e, self.a
        lskip = a.newlabel("Lskip")
        a.waitcnt(vm=0, lg=0)
        e(f"s_cmp_ge_u32 {sr(sH)}, 14")
        e(f"s_cbranch_scc1 {lskip}")
        wf = vAq
        def wreads(s):
            r = []
            for ct in range(4):
                d = wf + 16 * (s & 1) + 4 * ct
                r.append([f"ds_read_b64_tr_b16 {vr(d, 2)}, {vr(vWo + ct)} offset:{s * 4096}",
                          f"ds_read_b64_tr_b16 {vr(d + 2, 2)}, {vr(vWo + ct)} offset:{s * 4096 + 512}"])
            return r
        for grp in wreads(0):
            self.emit(grp)
        e(f"s_lshl_b32 {sr(sT1)}, {sr(sRB)}, 2")
        e(f"s_add_u32 {sr(sT1)}, {sr(sT1)}, {sr(sTo)}")
        e(f"s_lshl_b32 {sr(sT1)}, {sr(sT1)}, 7")
        e(f"s_add_u32 {sr(sT1)}, {sr(sT1)}, {WS_FO + layer * 8192}")
        e(f"s_mul_i32 {sr(sOff)}, {sr(sRB)}, {GRP}")
        e(f"s_mul_i32 {sr(sT2)}, {sr(sTo)}, {TILE}")
        e(f"s_add_u32 {sr(sOff)}, {sr(sOff)}, {sr(sT2)}")
        e(f"s_and_b32 {sr(sT2)}, {sr(sW)}, 1")
        e(f"s_mul_i32 {sr(sT2)}, {sr(sT2)}, 14336")
        e(f"s_add_u32 {sr(sOff)}, {sr(sOff)}, {sr(sT2)}")
        e(f"s_add_u32 {sr(sOff)}, {sr(sOff)}, {WS_O + self.buf(0x200000, layer)}")
        self.poll(vFlagO, sT1)
        self.stamp(f"o{layer + 1}_seen")
        D = self.o.odepth
        def oload(s):
            if s and s % 4 == 0:
                e(f"s_add_u32 {sr(sOff)}, {sr(sOff)}, 4096")
            e(f"buffer_load_dwordx4 {ar(aXF + 4 * s, 4)}, {vr(vL16)}, {sr(rWS, 4)}, {sr(sOff)} offen offset:{(s & 3) * 1024} sc1")
        for s in range(min(D, 14)):
            oload(s)
        for s in range(14):
            if s + D < 14:
                oload(s + D)
            nxt = wreads(s + 1) if s < 13 else [[]] * 4
            for ct in range(4):
                e(self.mfma16(vRes + 4 * ct, vr(wf + 16 * (s & 1) + 4 * ct, 4), ar(aXF + 4 * s, 4), vr(vRes + 4 * ct, 4)))
                self.emit(nxt[ct])
        X = vWf
        self.emit(self.cvt(X, vRes, 8))
        for q in (0, 4):
            e(f"v_permlane16_swap_b32 {vr(X + q)}, {vr(X + q + 2)}")
            e(f"v_permlane16_swap_b32 {vr(X + q + 1)}, {vr(X + q + 3)}")
        if layer == 3:
            e(f"buffer_store_dwordx4 {vr(X, 4)}, {vr(vOut)}, {sr(rOut, 4)}, 0 offen")
            e(f"buffer_store_dwordx4 {vr(X + 4, 4)}, {vr(vOut)}, {sr(rOut, 4)}, 0 offen offset:64")
            a.label(lskip)
            return
        e(f"s_mul_i32 {sr(sOff)}, {sr(sRB)}, {GRP}")
        e(f"s_add_u32 {sr(sOff)}, {sr(sOff)}, {WS_X + self.buf(0x200000, layer)}")
        toks = self.mode_ops([f"buffer_store_dwordx4 {vr(X, 4)}, {vr(vXst)}, {sr(rWS, 4)}, {sr(sOff)} offen",
                              f"buffer_store_dwordx4 {vr(X + 4, 4)}, {vr(vXst)}, {sr(rWS, 4)}, {sr(sOff)} offen offset:2048"])
        s2, q2 = vT, vT + 2
        e(self.pk("add", s2, vRes, vRes + 2))
        e(self.pk("mul", q2, vRes, vRes))
        e(self.pk("fma", q2, vRes + 2, vRes + 2, q2))
        for i in range(2, 8):
            e(self.pk("add", s2, s2, vRes + 2 * i))
            e(self.pk("fma", q2, vRes + 2 * i, vRes + 2 * i, q2))
        e(f"v_add_f32 {vr(s2)}, {vr(s2)}, {vr(s2 + 1)}")
        e(f"v_add_f32 {vr(q2)}, {vr(q2)}, {vr(q2 + 1)}")
        e(f"s_lshl_b32 {sr(sT2)}, {sr(sRB)}, 13")
        e(f"s_add_u32 {sr(sT2)}, {sr(sT2)}, {WS_STAT + layer * 0x20000}")
        self.emit(self.row_reduce(s2, q2))
        toks += self.mode_ops([f"buffer_store_dword {vr(s2)}, {vr(vStatSt)}, {sr(rWS, 4)}, {sr(sT2)} offen"])
        e(f"s_lshl_b32 {sr(sT1)}, {sr(sRB)}, 2")
        e(f"s_add_u32 {sr(sT1)}, {sr(sT1)}, {sr(sTo)}")
        e(f"s_lshl_b32 {sr(sT1)}, {sr(sT1)}, 7")
        e(f"s_lshl_b32 {sr(sT2)}, {sr(sCG)}, 1")
        e(f"s_and_b32 {sr(sT3)}, {sr(sW)}, 1")
        e(f"s_add_u32 {sr(sT2)}, {sr(sT2)}, {sr(sT3)}")
        e(f"s_lshl_b32 {sr(sT2)}, {sr(sT2)}, 2")
        e(f"s_add_u32 {sr(sT1)}, {sr(sT1)}, {sr(sT2)}")
        e(f"s_add_u32 {sr(sT1)}, {sr(sT1)}, {WS_FX + layer * 8192}")
        a.wait(*toks)
        self.flag_store(sT1)
        if layer == 1:
            e(f"buffer_store_dwordx4 {vr(X, 4)}, {vr(vHaloX)}, {sr(rWS, 4)}, 0 offen sc1")
            e(f"buffer_store_dwordx4 {vr(X + 4, 4)}, {vr(vHaloX)}, {sr(rWS, 4)}, 0 offen offset:512 sc1")
            e(f"buffer_store_dword {vr(s2)}, {vr(vHaloStSt)}, {sr(rWS, 4)}, 0 offen sc1")
            e("s_nop 1")
        a.label(lskip)
        self.stamp(f"x{layer + 1}_pub")

    def gemm(self, layer):
        e, a = self.e, self.a
        isA = layer == 2
        tiles = [(0, vAq, False), (1, vAk, False), (2, vAv, True)] if isA else [(1, vAk, False), (2, vAv, True)]
        coff = 0 if isA else 384
        def wbuf(s, i):
            return vWf + 12 * (s & 1) + 4 * i
        for i, (seg, _, _) in enumerate(tiles):
            self.emit(self.w_tr(wbuf(0, i), seg, 0))
        e(f"s_lshl_b32 {sr(sT1)}, {sr(sRB)}, 2")
        e(f"s_add_u32 {sr(sT1)}, {sr(sT1)}, {sr(sW)}")
        e(f"s_lshl_b32 {sr(sT1)}, {sr(sT1)}, 7")
        e(f"s_add_u32 {sr(sT1)}, {sr(sT1)}, {WS_FX + (layer - 1) * 8192}")
        e(f"s_mul_i32 {sr(sOff)}, {sr(sRB)}, {GRP}")
        e(f"s_mul_i32 {sr(sT2)}, {sr(sW)}, {TILE}")
        e(f"s_add_u32 {sr(sOff)}, {sr(sOff)}, {sr(sT2)}")
        e(f"s_add_u32 {sr(sOff)}, {sr(sOff)}, {WS_X + self.buf(0x200000, layer - 1)}")
        e(f"s_lshl_b32 {sr(sT2)}, {sr(sRB)}, 13")
        e(f"s_add_u32 {sr(sT2)}, {sr(sT2)}, {WS_STAT + (layer - 1) * 0x20000}")
        self.poll(vFlagX, sT1)
        self.stamp(f"x{layer}_seen")
        D = self.o.xdepth
        assert 4 <= D <= 13
        def xload(s):
            if s and s % 4 == 0:
                e(f"s_add_u32 {sr(sOff)}, {sr(sOff)}, 4096")
            e(f"buffer_load_dwordx4 {ar(aXF + 4 * s, 4)}, {vr(vL16)}, {sr(rWS, 4)}, {sr(sOff)} offen offset:{(s & 3) * 1024} sc1")
        st = vAt
        xload(0)
        xload(1)
        for q in range(4):
            e(f"buffer_load_dwordx2 {vr(st + 2 * q, 2)}, {vr(vStatLd3 if q == 3 else vStatLd)}, {sr(rWS, 4)}, {sr(sT2)} offen offset:{512 * q} sc1")
        for s in range(2, D):
            xload(s)
        fill = {}
        def add(step, lst):
            fill.setdefault(step, []).extend(lst)
        S, Q = vT + 10, vT + 11
        add(2, [f"v_add_f32 {vr(S)}, {vr(st)}, {vr(st + 2)}", f"v_add_f32 {vr(Q)}, {vr(st + 1)}, {vr(st + 3)}",
                f"v_add_f32 {vr(st + 4)}, {vr(st + 4)}, {vr(st + 6)}", f"v_add_f32 {vr(st + 5)}, {vr(st + 5)}, {vr(st + 7)}"])
        add(3, [f"v_add_f32 {vr(S)}, {vr(S)}, {vr(st + 4)}", f"v_add_f32 {vr(Q)}, {vr(Q)}, {vr(st + 5)}",
                f"v_mov_b32 {vr(vT)}, {vr(S)}", f"v_mov_b32 {vr(vT + 1)}, {vr(Q)}"])
        add(4, [f"v_permlane32_swap_b32 {vr(S)}, {vr(vT)}", f"v_permlane32_swap_b32 {vr(Q)}, {vr(vT + 1)}",
                f"v_add_f32 {vr(S)}, {vr(S)}, {vr(vT)}", f"v_add_f32 {vr(Q)}, {vr(Q)}, {vr(vT + 1)}"])
        fin = self.stats_finish(S, Q, self.tA, self.tB)
        add(5, fin[:4])
        add(6, fin[4:])
        add(7, self.stats_publish())
        rb = self.stats_readback()
        add(8, rb[:4])
        add(9, rb[4:])
        if layer != 1:
            cr = self.c_reads(coff, q=isA)
            add(10, cr[:5])
            add(11, cr[5:])
            work = (self.q_scalars() if isA else []) + self.scale16(vBk, self.tB, False) + self.scale16(vBv, self.tCv, False)
            if isA:
                work += self.scale16(vBq, self.tBq, False)
            per = 4
            for i in range(0, len(work), per):
                add(12 + i // per, work[i:i + per])
        sw = vT + 20
        halo_toks = []
        for s in range(28):
            if s + D < 28:
                xload(s + D)
            elif isA:
                k = s + D - 28
                if k == 0:
                    for j in range(14):
                        if j == 8:
                            e(f"s_mov_b32 {sr(sT3)}, 4096")
                        so = "0" if j < 8 else sr(sT3)
                        halo_toks.append(e(f"buffer_load_dwordx4 {ar(aHF + 4 * j, 4)}, {vr(vHaloLd)}, {sr(rWS, 4)}, {so} offen offset:{(j & 7) * 512} sc1"))
                    self.halo_stat_loads = [
                        f"buffer_load_dwordx2 {vr(vT + 12, 2)}, {vr(vHaloStLd)}, {sr(rWS, 4)}, 0 offen sc1",
                        f"buffer_load_dwordx2 {vr(vT + 14, 2)}, {vr(vT + 20)}, {sr(rWS, 4)}, 0 offen offset:256 sc1"]
                    e(f"v_mov_b32 {vr(vT + 20)}, {OOB}")
                    e(f"s_mov_b32 {sr(sM)}, 0")
                    e(f"s_mov_b32 {sr(sM + 1)}, 0xffff0000")
                    e(f"v_cndmask_b32_e64 {vr(vT + 20)}, {vr(vHaloStLd)}, {vr(vT + 20)}, {sr(sM, 2)}")
                    halo_toks += [e(t) for t in self.halo_stat_loads]
                elif k == 1:
                    for j in range(14):
                        self.wo_dma(rWoA, j)
            if s == 14:
                a.barrier()
            x = ar(aXF + 4 * s, 4)
            fl = list(fill.get(s, []))
            n = len(tiles)
            for i, (seg, acc, swp) in enumerate(tiles):
                w = vr(wbuf(s, i), 4)
                c = "0" if s == 0 else vr(acc, 16)
                e(self.mfma32(acc, x, w, c) if swp else self.mfma32(acc, w, x, c))
                if s < 27:
                    self.emit(self.w_tr(wbuf(s + 1, i), seg, s + 1))
                take = -(-len(fl) // (n - i))
                self.emit(fl[:take])
                fl = fl[take:]
            if layer == 1:
                if s % 2 == 0:
                    self.emit(self.side_tr(sw, vSide, s >> 1))
                else:
                    e(self.mfma16(self.hC, vr(sw, 4), vr(vOnes, 4), "0" if s == 1 else vr(self.hC, 4)))
        for s in sorted(fill):
            if s >= 28:
                self.emit(fill[s])
        if isA:
            self.halo_tile(halo_toks)
        if layer == 1:
            e(f"s_mov_b64 exec, {sr(sMaskC, 2)}")
            e(f"ds_write_b128 {vr(vCh)}, {vr(self.hC, 4)} offset:384")
            e("s_mov_b64 exec, -1")
            a.barrier()
            self.emit(self.c_reads(coff, q=False))
            self.emit(self.scale16(vBk, self.tB, True) + self.scale16(vBv, self.tCv, True))
        self.stamp(f"gemm{layer + 1}")

    def halo_tile(self, toks):
        e, a = self.e, self.a
        hs = vT + 12
        lr, lo = a.newlabel("Lhaloretry"), a.newlabel("Lhalook")
        sw = (vWf, vWf + 4)
        self.emit(self.side_tr(sw[0], vSide, 0))
        e(f"ds_read_b128 {vr(self.hC, 4)}, {vr(vCh)}")
        a.wait(*toks)
        chk = []
        for j in range(14):
            chk.append(f"v_accvgpr_read_b32 {vr(vWf + 8 + j)}, {ar(aHF + 4 * j + 3)}")
        chk.append(f"v_max3_u32 {vr(vT)}, {vr(hs)}, {vr(hs + 1)}, {vr(hs + 2)}")
        chk.append(f"v_max_u32 {vr(vT + 1)}, {vr(hs + 3)}, {vr(vWf + 8)}")
        for j in range(1, 13, 4):
            chk.append(f"v_max3_u32 {vr(vT)}, {vr(vT)}, {vr(vWf + 8 + j)}, {vr(vWf + 9 + j)}")
            chk.append(f"v_max3_u32 {vr(vT + 1)}, {vr(vT + 1)}, {vr(vWf + 10 + j)}, {vr(vWf + 11 + j)}")
        chk.append(f"v_max3_u32 {vr(vT)}, {vr(vT)}, {vr(vT + 1)}, {vr(vWf + 21)}")
        chk.append(f"v_cmp_eq_u32 vcc, -1, {vr(vT)}")
        self.emit(chk)
        e(f"s_cbranch_vccnz {lr}")
        a.label(lo)
        tail = [lr + ":", f"    s_mov_b32 {sr(sT3)}, 4096"]
        for j in range(14):
            so = "0" if j < 8 else sr(sT3)
            tail.append(f"    buffer_load_dwordx4 {ar(aHF + 4 * j, 4)}, {vr(vHaloLd)}, {sr(rWS, 4)}, {so} offen offset:{(j & 7) * 512} sc1")
        tail += ["    " + t for t in self.halo_stat_loads]
        tail.append("    s_waitcnt vmcnt(0)")
        tail += ["    " + t for t in chk]
        tail += [f"    s_cbranch_vccz {lo}", f"    s_sub_u32 {sr(sBud)}, {sr(sBud)}, 1", f"    s_cbranch_scc0 {lr}",
                 f"    s_mov_b32 {sr(sBud)}, 0", f"    s_branch {lo}"]
        a.tail += tail
        S, Q = vT + 10, vT + 11
        e(f"v_add_f32 {vr(S)}, {vr(hs)}, {vr(hs + 2)}")
        e(f"v_add_f32 {vr(Q)}, {vr(hs + 1)}, {vr(hs + 3)}")
        fl = self.halo_stats(S, Q)
        for j in range(14):
            if j < 13:
                self.emit(self.side_tr(sw[(j + 1) & 1], vSide, j + 1))
            e(self.mfma16(self.hAcc, vr(sw[j & 1], 4), ar(aHF + 4 * j, 4), "0" if j == 0 else vr(self.hAcc, 4)))
            self.emit(fl[:1])
            fl = fl[1:]
        self.emit(fl)

    def feature_map(self, src, P, E2, dst):
        r = [self.mfma32(P, vr(vPhi, 4), vr(src, 4), "0"), self.mfma32(P, vr(vPhi + 4, 4), vr(src + 4, 4), vr(P, 16))]
        mx, mn, t0, t1 = vT, vT + 1, vT + 10, vT + 11
        real = [0, 1, 2, 3, 4, 5, 6, 8, 9, 10, 11, 12, 13, 14]
        r.append(f"v_max3_f32 {vr(mx)}, {vr(P)}, {vr(P + 1)}, {vr(P + 2)}")
        r.append(f"v_min3_f32 {vr(mn)}, {vr(P)}, {vr(P + 1)}, {vr(P + 2)}")
        for i in range(3, 13, 2):
            r.append(f"v_max3_f32 {vr(mx)}, {vr(mx)}, {vr(P + real[i])}, {vr(P + real[i + 1])}")
            r.append(f"v_min3_f32 {vr(mn)}, {vr(mn)}, {vr(P + real[i])}, {vr(P + real[i + 1])}")
        r.append(f"v_max_f32 {vr(mx)}, {vr(mx)}, {vr(P + 14)}")
        r.append(f"v_min_f32 {vr(mn)}, {vr(mn)}, {vr(P + 14)}")
        r += [f"v_mov_b32 {vr(t0)}, {vr(mx)}", f"v_mov_b32 {vr(t1)}, {vr(mn)}",
              f"s_mov_b32 {sr(sK)}, {f32(LOG2E)}", f"s_mov_b32 {sr(sK + 1)}, {f32(LOG2E)}",
              f"v_permlane32_swap_b32 {vr(mx)}, {vr(t0)}", f"v_permlane32_swap_b32 {vr(mn)}, {vr(t1)}",
              f"v_max_f32 {vr(mx)}, {vr(mx)}, {vr(t0)}", f"v_min_f32 {vr(mn)}, {vr(mn)}, {vr(t1)}",
              f"v_mul_f32 {vr(mx)}, {sr(sK)}, {vr(mx)}", f"v_mul_f32 {vr(mn)}, {sr(sK)}, {vr(mn)}"]
        for i in range(0, 16, 2):
            r.append(self.pk("fma", E2 + i, P + i, sr(sK, 2), mn, bc=(2,), neg=(0,)))
            r.append(self.pk("fma", P + i, P + i, sr(sK, 2), mx, bc=(2,), neg=(2,)))
        for i in real:
            r.append(f"v_exp_f32 {vr(P + i)}, {vr(P + i)}")
            r.append(f"v_exp_f32 {vr(E2 + i)}, {vr(E2 + i)}")
        sp, sn = vT + 12, vT + 14
        r += [self.pk("add", sp, P, P + 2), self.pk("add", sn, E2, E2 + 2)]
        for i in (4, 8, 10, 12):
            r += [self.pk("add", sp, sp, P + i), self.pk("add", sn, sn, E2 + i)]
        r += [f"v_add_f32 {vr(sp)}, {vr(sp)}, {vr(sp + 1)}", f"v_add_f32 {vr(sn)}, {vr(sn)}, {vr(sn + 1)}",
              f"v_add_f32 {vr(t0)}, {vr(P + 6)}, {vr(P + 14)}", f"v_add_f32 {vr(t1)}, {vr(E2 + 6)}, {vr(E2 + 14)}",
              f"v_add_f32 {vr(sp)}, {vr(sp)}, {vr(t0)}", f"v_add_f32 {vr(sn)}, {vr(sn)}, {vr(t1)}",
              f"v_mov_b32 {vr(t0)}, {vr(sp)}", f"v_mov_b32 {vr(t1)}, {vr(sn)}", "s_nop 0",
              f"v_permlane32_swap_b32 {vr(sp)}, {vr(t0)}", f"v_permlane32_swap_b32 {vr(sn)}, {vr(t1)}",
              f"v_add_f32 {vr(sp)}, {vr(sp)}, {vr(t0)}", f"v_add_f32 {vr(sn)}, {vr(sn)}, {vr(t1)}",
              f"v_rcp_f32 {vr(sp)}, {vr(sp)}", f"v_rcp_f32 {vr(sn)}, {vr(sn)}"]
        for base, s, d in ((P, sp, dst), (E2, sn, dst + 8)):
            for i in range(8):
                r.append(self.pk("mul", base + 2 * i, base + 2 * i, s, bc=(1,)))
            for i in range(8):
                hi = "0" if i in (3, 7) else vr(base + 2 * i + 1)
                r.append(f"v_cvt_pk_bf16_f32 {vr(d + i)}, {vr(base + 2 * i)}, {hi}")
        return r

    def linear_attention(self, layer):
        e, a = self.e, self.a
        Kf, Vf = vWf, vWf + 8
        self.emit(self.correct(vAk, self.tA, vBk))
        self.emit(self.cvt(Kf, vAk, 8))
        fm = self.feature_map(Kf, vAk, vBk, vBq)
        self.emit(fm[:2])
        self.emit(self.v_frags(Vf))
        e(f"ds_write_b128 {vr(vVfW)}, {vr(Vf, 4)}")
        e(f"ds_write_b128 {vr(vVfW)}, {vr(Vf + 4, 4)} offset:1024")
        self.emit(fm[2:])
        for f in range(4):
            e(f"ds_write_b128 {vr(vPkW)}, {vr(vBq + 4 * f, 4)} offset:{32 * f}")
        a.barrier()
        A, B, acc = vAt, vAk, vT + 12
        for T in range(4):
            e(f"ds_read_b64_tr_b16 {vr(A + 4 * T, 2)}, {vr(vPkR)} offset:{T * 32 * PKROW}")
            e(f"ds_read_b64_tr_b16 {vr(A + 4 * T + 2, 2)}, {vr(vPkR)} offset:{T * 32 * PKROW + 8 * PKROW}")
            for dh in range(2):
                e(f"ds_read_b128 {vr(B + 8 * T + 4 * dh, 4)}, {vr(vVfR)} offset:{T * 2048 + dh * 256}")
        kvl = (layer - 1) // 2
        e(f"s_lshl_b32 {sr(sOff)}, {sr(sH)}, 2")
        e(f"s_add_u32 {sr(sOff)}, {sr(sOff)}, {sr(sW)}")
        e(f"s_lshl_b32 {sr(sOff)}, {sr(sOff)}, 14")
        e(f"s_add_u32 {sr(sOff)}, {sr(sOff)}, {WS_KV + kvl * 0x100000}")
        e(f"s_lshl_b32 {sr(sT1)}, {sr(sRB)}, 10")
        e(f"s_add_u32 {sr(sT1)}, {sr(sT1)}, {sr(sOff)}")
        tg = vT + 10
        e(f"v_mov_b32 {vr(tg)}, {sr(sTag16)}")
        for T in range(4):
            for dh in range(2):
                e(self.mfma16(acc + 4 * dh, vr(A + 4 * T, 4), vr(B + 8 * T + 4 * dh, 4), "0" if T == 0 else vr(acc + 4 * dh, 4)))
        G = vWf
        self.emit(self.cvt(G, acc, 4))
        e(f"v_permlane16_swap_b32 {vr(G)}, {vr(G + 2)}")
        e(f"v_permlane16_swap_b32 {vr(G + 1)}, {vr(G + 3)}")
        e(f"v_mov_b32_sdwa {vr(G + 3)}, {vr(tg)} dst_sel:WORD_1 dst_unused:UNUSED_PRESERVE src0_sel:WORD_0")
        e("s_nop 0")
        e(f"buffer_store_dwordx4 {vr(G, 4)}, {vr(vL16)}, {sr(rWS, 4)}, {sr(sT1)} offen sc1")
        self.stamp(f"kv{layer + 1}_pub")
        a.barrier()
        for j in range(14):
            self.wo_dma(rWoB, j)
        wq = vWf + 8
        self.emit(self.w_tr(wq, 0, 0))
        if layer != 1:
            self.emit(self.c_reads(384, kv=False))
        sw = vT + 20
        for s in range(28):
            w = vr(wq + 4 * (s & 1), 4)
            e(self.mfma32(vAq, w, ar(aXF + 4 * s, 4), "0" if s == 0 else vr(vAq, 16)))
            if s < 27:
                self.emit(self.w_tr(wq + 4 * ((s + 1) & 1), 0, s + 1))
            if layer == 1:
                if s % 2 == 0:
                    self.emit(self.side_tr(sw, vSideQ, s >> 1))
                else:
                    e(self.mfma16(self.hC, vr(sw, 4), vr(vOnes, 4), "0" if s == 1 else vr(self.hC, 4)))
            elif 4 <= s < 12:
                i = 2 * (s - 4)
                e(f"v_mul_f32 {vr(vBq + i)}, {vr(self.tB)}, {vr(vBq + i)}")
                e(f"v_mul_f32 {vr(vBq + i + 1)}, {vr(self.tB)}, {vr(vBq + i + 1)}")
        L = vBk
        def kreg(r):
            return (L + 4 * r) if r < 12 else (vAv + 4 * (r - 12))
        loads = []
        for r in range(16):
            if r % 4 == 0:
                loads.append(f"s_add_u32 {sr(sT1)}, {sr(sOff)}, {r * 1024}")
            loads.append(f"buffer_load_dwordx4 {vr(kreg(r), 4)}, {vr(vL16)}, {sr(rWS, 4)}, {sr(sT1)} offen offset:{(r & 3) * 1024} sc1")
        self.emit(loads)
        if layer == 1:
            e(f"s_lshr_b32 {sr(sT1)}, {sr(sW)}, 1")
            e(f"s_add_u32 {sr(sT1)}, {sr(sT1)}, 1")
            e(f"s_lshl_b32 {sr(sT1)}, {sr(sT1)}, 7")
            e(f"v_subrev_u32 {vr(vT)}, {sr(sT1)}, {vr(vCh)}")
            e(f"s_mov_b64 exec, {sr(sMaskC, 2)}")
            e(f"ds_write_b128 {vr(vT)}, {vr(self.hC, 4)} offset:384")
            e("s_mov_b64 exec, -1")
            a.barrier()
            self.emit(self.c_reads(384, kv=False))
            self.emit(self.scale16(vBq, self.tB, True))
        self.emit(self.correct(vAq, self.tA, vBq))
        self.emit(self.cvt(vWf, vAq, 8))
        PQ = vWf + 8
        self.emit(self.feature_map(vWf, vAq, vBq, PQ))
        self.stamp(f"q{layer + 1}_done")
        lc, lo = a.newlabel("Lkvcheck"), a.newlabel("Lkvok")
        e(f"v_mov_b32 {vr(tg)}, {sr(sTag16)}")
        e(f"s_mov_b64 {sr(sAcc, 2)}, 0")
        e("s_nop 4")
        a.label(lc)
        R = vAk
        for r in range(16):
            e(self.mfma32(R, vr(vSel, 4), vr(kreg(r), 4), "0" if r == 0 else vr(R, 16)))
            e(f"v_cmp_ne_u16_sdwa vcc, {vr(kreg(r) + 3)}, {vr(tg)} src0_sel:WORD_1 src1_sel:WORD_0")
            e(f"s_or_b64 {sr(sAcc, 2)}, {sr(sAcc, 2)}, vcc")
        lr = a.newlabel("Lkvretry")
        e(f"s_cmp_lg_u64 {sr(sAcc, 2)}, 0")
        e(f"s_cbranch_scc1 {lr}")
        a.label(lo)
        a.tail += [lr + ":", f"    s_sub_u32 {sr(sBud)}, {sr(sBud)}, 1", f"    s_cbranch_scc0 {lr}_go",
                   f"    s_mov_b32 {sr(sBud)}, 0", f"    s_branch {lo}", f"{lr}_go:", "    s_nop 7"]
        a.tail += ["    " + t for t in loads]
        a.tail += [f"    s_mov_b64 {sr(sAcc, 2)}, 0", f"    s_branch {lc}"]
        self.stamp(f"kv{layer + 1}_in")
        for i in range(4):
            hi = "0" if i == 3 else vr(R + 2 * i + 1)
            e(f"v_cvt_pk_bf16_f32 {vr(vWf + i)}, {vr(R + 2 * i)}, {hi}")
        e(f"ds_write_b128 {vr(vKvW)}, {vr(vWf, 4)}")
        a.barrier()
        for f in range(4):
            e(f"ds_read_b128 {vr(vBq + 4 * f, 4)}, {vr(vKvR)} offset:{1024 * f}")
        if layer == 3:
            e(f"s_or_b32 {sr(sT1)}, s2, {sr(sW)}")
            e(f"s_cmp_eq_u32 {sr(sT1)}, 0")
            e(f"s_cselect_b32 {sr(sT1)}, {WS_E}, {OOB}")
            e("s_mov_b64 exec, 1")
            e(f"buffer_store_dword {vr(vTag)}, off, {sr(rWS, 4)}, {sr(sT1)} sc1")
            e("s_mov_b64 exec, -1")
        for f in range(4):
            e(self.mfma32(vAv, vr(vBq + 4 * f, 4), vr(PQ + 4 * f, 4), "0" if f == 0 else vr(vAv, 16)))
        self.publish_o(layer, vAv, 1e-6)
        self.stamp(f"o{layer + 1}_pub")

    def finish(self):
        e, a = self.e, self.a
        a.label("L_fin")
        if self.o.diag:
            a.force("s_waitcnt vmcnt(0) lgkmcnt(0)")
            a.label("L_diag")
            e(f"s_memtime {sr(sStamp + 2, 2)}")
            a.force("s_waitcnt lgkmcnt(0)")
            e(f"s_sub_u32 {sr(sT0)}, {sr(sStamp + 2)}, {sr(sStamp)}")
            e(f"s_cmp_lt_u32 {sr(sT0)}, 200000")
            e("s_cbranch_scc1 L_diag")
        if self.o.prof:
            self.stamp("end")
            a.force("s_waitcnt vmcnt(0) lgkmcnt(0)")
            e(f"v_mov_b32 {vr(vT)}, 0")
            for i in range(self.nstamp):
                src = sStamp + 4 + i if i < self.nstamp - 2 else sStamp + 2 * (i & 1)
                e(f"v_writelane_b32 {vr(vT)}, {sr(src)}, {i}")
            e(f"v_writelane_b32 {vr(vT)}, s100, 62")
            e(f"v_writelane_b32 {vr(vT)}, {sr(sBud)}, 63")
            e(f"v_writelane_b32 {vr(vT)}, {sr(sSlow)}, 61")
            e(f"v_writelane_b32 {vr(vT)}, {sr(sXcc)}, 60")
            e(f"s_lshl_b32 {sr(sT0)}, s2, 2")
            e(f"s_add_u32 {sr(sT0)}, {sr(sT0)}, {sr(sW)}")
            e(f"s_lshl_b32 {sr(sT0)}, {sr(sT0)}, 8")
            e(f"s_add_u32 {sr(sT0)}, {sr(sT0)}, {WS_DBG}")
            e(f"v_lshlrev_b32 {vr(vT + 1)}, 2, {vr(vL)}")
            e(f"buffer_store_dword {vr(vT)}, {vr(vT + 1)}, {sr(rWS, 4)}, {sr(sT0)} offen")
        a.label("L_end")
        e("s_endpgm")

    def build(self):
        o = self.o
        saved = o.prof
        def gate(layer):
            o.prof = saved and (layer in o.prof_layers)
        gate(0)
        self.prologue()
        self.gemm_l1()
        self.attention(0)
        for layer in range(4):
            gate(layer)
            if layer > 0:
                self.gemm(layer)
                if layer == 2:
                    self.attention(layer)
                else:
                    self.linear_attention(layer)
            if o.stop == 2 * layer:
                break
            self.between(layer)
            self.outproj(layer)
            if o.stop == 2 * layer + 1:
                break
        o.prof = saved
        self.finish()
        head = (f"; Persistent kernel: 256 workgroups = 16 row blocks x 16 heads, generated by a script.\n"
                f"; @launch grid=(256,1,1) block=(256,1,1) lds={LDS_BYTES}\n"
                '.amdgcn_target "amdgcn-amd-amdhsa--gfx950"\n.text\n'
                f".globl {KERNEL}\n.p2align 8\n.type {KERNEL},@function\n{KERNEL}:\n")
        foot = ("L_code_end:\n    s_endpgm\n"
                '.section .rodata,"a"\n.p2align 6\n'
                f".amdhsa_kernel {KERNEL}\n"
                "  .amdhsa_next_free_vgpr 512\n  .amdhsa_next_free_sgpr 102\n  .amdhsa_accum_offset 256\n"
                "  .amdhsa_group_segment_fixed_size 0\n  .amdhsa_kernarg_size 80\n"
                "  .amdhsa_user_sgpr_count 2\n  .amdhsa_user_sgpr_kernarg_segment_ptr 1\n"
                "  .amdhsa_system_sgpr_workgroup_id_x 1\n.end_amdhsa_kernel\n")
        return head + self.a.text() + foot


def main():
    p = argparse.ArgumentParser()
    p.add_argument("-o", "--out", default=f"cdna_kernels/{NAME}.s")
    p.add_argument("--sep", action="store_true", help="separate exchange buffers per layer (debug)")
    p.add_argument("--prof", action="store_true")
    p.add_argument("--prof-layers", default="0,1,2,3")
    p.add_argument("--skip", default="q4_done")
    p.add_argument("--diag", default="", help="diagnostic build: end 200000 cycles after this stamp")
    p.add_argument("--stop", type=int, default=-1)
    p.add_argument("--force-slow", action="store_true")
    p.add_argument("--xdepth", type=int, default=10)
    p.add_argument("--odepth", type=int, default=10)
    o = p.parse_args()
    o.prof_layers = [int(x) for x in o.prof_layers.split(",")]
    o.skip = o.skip.split(",")
    g = Gen(o)
    txt = g.build()
    open(o.out, "w").write(txt)
    if o.prof:
        open(o.out + ".stamps", "w").write(",".join(g.stamp_names))
    print("wrote", o.out, len(txt), "bytes of text;", sum(1 for k, _ in g.a.lines if k == "i"), "instructions")


if __name__ == "__main__":
    main()
```
